```python
import torch

def _softmax(x, axis=-1):
    return torch.softmax(x, dim=axis)

def _gelu(x):
    return torch.nn.functional.gelu(x, approximate='tanh')

def _silu(x):
    return torch.nn.functional.silu(x)

def _sigmoid(x):
    return torch.sigmoid(x)

def _layernorm(x, axis=-1, eps=1e-05):
    m = x.mean(dim=axis, keepdim=True)
    v = x.var(dim=axis, keepdim=True, unbiased=False)
    return (x - m) / torch.sqrt(v + eps)

def _scatter_add(tgt, idx, src, axis=0):
    return tgt.clone().index_add_(axis, idx, src)

def _segment_sum(src, seg, n):
    out = torch.zeros((n,) + src.shape[1:], dtype=src.dtype)
    return out.index_add_(0, seg, src)

def _pad(x, pw):
    flat = tuple((v for pair in reversed(pw) for v in pair))
    return torch.nn.functional.pad(x, flat)
kernel_name = 'adaLN_cond__memory_aug_recurrent_mem_tr__dense_activation_gelu__prompt'

def setup_inputs():

    _w = lambda a: (lambda t: t.to(torch.bfloat16) if t.is_floating_point() else t)(torch.as_tensor(a))

    def _A_setup():
        B, S, Dm = (1, 2048, 1024)
        H, Dh = (32, 128)
        M, seg = (8, 32)
        seg = min(seg, S)
        S = S // seg * seg
        return {'x': _w((lambda *s: torch.randn(*s, dtype=torch.bfloat16) * 0.05)(B, S, Dm)), 'mem0': _w((lambda *s: torch.randn(*s, dtype=torch.bfloat16) * 0.8)(B, M, Dm)), 'Wq': _w((lambda *s: torch.randn(*s, dtype=torch.bfloat16) * 1.6)(Dm, H, Dh) * Dm ** (-0.5)), 'Wk': _w((lambda *s: torch.randn(*s, dtype=torch.bfloat16) * 1.6)(Dm, H, Dh) * Dm ** (-0.5)), 'Wv': _w((lambda *s: torch.randn(*s, dtype=torch.bfloat16) * 0.8)(Dm, H, Dh) * Dm ** (-0.5)), 'Wo': _w((lambda *s: torch.randn(*s, dtype=torch.bfloat16) * 0.8)(H, Dh, Dm) * (H * Dh) ** (-0.5)), 'seg_len': seg}
    _A_in = _A_setup()

    def _B_setup():
        B, S, D, F = (1, 2048, 1024, 3584)
        return {'x': _w((lambda *s: torch.randn(*s, dtype=torch.bfloat16) * 0.05)(B, S, D)), 'w1': _w((lambda *s: torch.randn(*s, dtype=torch.bfloat16) * 1.6)(D, F) * D ** (-0.5)), 'b1': _w((lambda *s: torch.randn(*s, dtype=torch.bfloat16) * 1.6)(F) * 0.01), 'w2': _w((lambda *s: torch.randn(*s, dtype=torch.bfloat16) * 0.2)(F, D) * F ** (-0.5)), 'b2': _w((lambda *s: torch.randn(*s, dtype=torch.bfloat16) * 0.2)(D) * 0.01)}
    _B_in = _B_setup()
    return {'A_x': _A_in['x'], 'A_mem0': _A_in['mem0'], 'A_Wq': _A_in['Wq'], 'A_Wk': _A_in['Wk'], 'A_Wv': _A_in['Wv'], 'A_Wo': _A_in['Wo'], 'A_seg_len': _A_in['seg_len'], 'B_x': _B_in['x'], 'B_w1': _B_in['w1'], 'B_b1': _B_in['b1'], 'B_w2': _B_in['w2'], 'B_b2': _B_in['b2'], 'c': _w((lambda *s: torch.randn(*s, dtype=torch.bfloat16) * 0.05)(1, 1024) * 8.0), 'w_mod': _w((lambda *s: torch.randn(*s, dtype=torch.bfloat16) * 0.05)(1024, 6 * 1024) * 1024 ** (-0.5) * 8.0)}

def reference(A_x, A_mem0, A_Wq, A_Wk, A_Wv, A_Wo, A_seg_len, B_x, B_w1, B_b1, B_w2, B_b2, c, w_mod):

    def _A_ref(x, mem0, Wq, Wk, Wv, Wo, seg_len):
        B, S, Dm = x.shape
        H, Dh = (Wq.shape[1], Wq.shape[2])
        M = mem0.shape[1]
        scale = Dh ** (-0.5)
        n_seg = S // seg_len
        L = M + seg_len
        idx = torch.arange(L)
        mask = (idx[:, None] < M) | (idx[:, None] >= idx[None, :])
        mem = mem0
        outs = []
        for s in range(n_seg):
            xs = x[:, s * seg_len:(s + 1) * seg_len, :].clone()
            h = torch.concatenate([mem, xs], axis=1)
            q = torch.einsum('btd,dhe->bhte', h, Wq)
            k = torch.einsum('btd,dhe->bhte', h, Wk)
            v = torch.einsum('btd,dhe->bhte', h, Wv)
            scores = torch.einsum('bhqe,bhke->bhqk', q, k) * scale
            scores = torch.where(mask[None, None], scores, -1000000000.0)
            p = _softmax(scores, axis=-1)
            o = torch.einsum('bhqk,bhke->bhqe', p, v)
            o = torch.einsum('bhte,hed->btd', o, Wo)
            mem = o[:, :M, :].clone()
            outs.append(o[:, M:, :])
        return torch.concatenate(outs, axis=1)

    def _B_ref(x, w1, b1, w2, b2):
        h = torch.einsum('bsd,df->bsf', x, w1) + b1
        h = _gelu(h)
        return torch.einsum('bsf,fd->bsd', h, w2) + b2
    x = A_x
    mod = (_silu(c) @ w_mod).reshape(c.shape[0], 6, 1, -1)
    sa, ca, ga, sb, cb, gb = (mod[:, 0].clone(), mod[:, 1].clone(), mod[:, 2].clone(), mod[:, 3].clone(), mod[:, 4].clone(), mod[:, 5].clone())
    h = _layernorm(x, axis=-1) * (1 + ca) + sa
    x = x + ga * _A_ref(h, A_mem0, A_Wq, A_Wk, A_Wv, A_Wo, A_seg_len)
    h = _layernorm(x, axis=-1) * (1 + cb) + sb
    x = x + gb * _B_ref(h, B_w1, B_b1, B_w2, B_b2)
    return x
```

```python
import sys, os

NAME = "adaLN_cond__memory_aug_recurrent_mem_tr__dense_activation_gelu__prompt"

WS_MOD = 0x0000000
WS_MEMB = 0x7000000
WS_RED = 0x7800000
WS_GRED = WS_RED + 0x200000
WS_FILL_END = WS_GRED + 0x1000000
WS_XCC = WS_FILL_END
WS_H1 = 0x0400000
WS_X1 = 0x0800000
WS_H2 = 0x0C00000
WS_MKV = 0x1000000
WS_QKV = 0x2000000
WS_OX = 0x5000000
WS_F = 0x6000000
WS_SIZE = 268435456

KA = dict(x=0, mem0=8, Wq=16, Wk=24, Wv=32, Wo=40, seg=48, Bx=56, w1=64, b1=72, w2=80, b2=88,
          c=96, wmod=104, out=112, dbg=120, ws=128)


class Asm:
    def __init__(self):
        self.l = []
        self.uid = 0

    def __call__(self, s):
        for line in s.strip().split("\n"):
            line = line.strip()
            if not line:
                continue
            if line.endswith(":"):
                self.l.append(line)
            else:
                self.l.append("    " + line)

    def lab(self, base):
        self.uid += 1
        return f"L_{base}_{self.uid}"

    def text(self):
        return "\n".join(self.l) + "\n"


def srd(a, d, base_lo, base_hi, size, off=0):
    if off:
        a(f"s_add_u32 s{d}, s{base_lo}, {off:#x}")
        a(f"s_addc_u32 s{d+1}, s{base_hi}, 0")
        a(f"s_and_b32 s{d+1}, s{d+1}, 0xffff")
    else:
        a(f"s_mov_b32 s{d}, s{base_lo}")
        a(f"s_and_b32 s{d+1}, s{base_hi}, 0xffff")
    a(f"s_mov_b32 s{d+2}, {size:#x}")
    a(f"s_mov_b32 s{d+3}, 0x00020000")


def kernel_header(a, name):
    a.l.append(f".globl {name}")
    a.l.append(".p2align 8")
    a.l.append(f".type {name},@function")
    a.l.append(f"{name}:")


def kd(name, vgpr, sgpr=102, accum=None):
    if accum is None:
        accum = (vgpr + 3) // 4 * 4
    return f""".p2align 6
.amdhsa_kernel {name}
  .amdhsa_next_free_vgpr {vgpr}
  .amdhsa_next_free_sgpr {sgpr}
  .amdhsa_accum_offset {accum}
  .amdhsa_group_segment_fixed_size 0
  .amdhsa_kernarg_size 136
  .amdhsa_user_sgpr_count 2
  .amdhsa_user_sgpr_kernarg_segment_ptr 1
  .amdhsa_system_sgpr_workgroup_id_x 1
.end_amdhsa_kernel
"""


def rnd_bf16(a, v, tmp=None):
    a(f"v_cvt_pk_bf16_f32 v{v}, v{v}, v{v}")
    a(f"v_lshlrev_b32 v{v}, 16, v{v}")


def wave_sum_to_sgpr(a, v, s):
    a("s_nop 1")
    for sh in (1, 2, 4, 8):
        a(f"v_add_f32_dpp v{v}, v{v}, v{v} row_shr:{sh} row_mask:0xf bank_mask:0xf bound_ctrl:0")
        a("s_nop 1")
    a(f"v_add_f32_dpp v{v}, v{v}, v{v} row_bcast:15 row_mask:0xa bank_mask:0xf")
    a("s_nop 1")
    a(f"v_add_f32_dpp v{v}, v{v}, v{v} row_bcast:31 row_mask:0xc bank_mask:0xf")
    a("s_nop 1")
    a(f"v_readlane_b32 s{s}, v{v}, 63")


def gen_mod(a):
    name = "k0_mod_kernel"
    kernel_header(a, name)
    done = a.lab("mod_done")
    a(f"""
    s_cmp_ge_u32 s2, 192
    s_cbranch_scc1 {done}
    s_load_dwordx2 s[4:5], s[0:1], {KA['c']}
    s_load_dwordx2 s[6:7], s[0:1], {KA['wmod']}
    s_load_dwordx2 s[20:21], s[0:1], {KA['ws']}
    s_load_dwordx2 s[22:23], s[0:1], {KA['mem0']}
    v_and_b32 v1, 3, v0
    v_lshrrev_b32 v2, 2, v0
    s_waitcnt lgkmcnt(0)
    """)
    srd(a, 8, 4, 5, 2048)
    srd(a, 12, 6, 7, 1024 * 6144 * 2)
    srd(a, 16, 20, 21, WS_SIZE)
    srd(a, 32, 22, 23, 16384)
    a("""
    v_lshlrev_b32 v3, 5, v2
    buffer_load_dwordx4 v[8:11], v3, s[8:11], 0 offen
    buffer_load_dwordx4 v[12:15], v3, s[8:11], 0 offen offset:16
    """)
    a("""
    s_mov_b32 s36, 196608
    v_mul_lo_u32 v4, v2, s36
    v_lshlrev_b32 v5, 4, v1
    v_add_u32 v4, v4, v5
    s_lshl_b32 s37, s2, 6
    """)
    for i in range(16):
        a(f"buffer_load_dwordx4 v[{32+4*i}:{35+4*i}], v4, s[12:15], s37 offen")
        if i < 15:
            a("v_add_u32 v4, 12288, v4")
    PF0 = int(os.environ.get("PF0", "2"))
    if PF0:
        a(f"""
        s_load_dwordx4 s[40:43], s[0:1], {KA['Wq']}
        s_load_dwordx2 s[44:45], s[0:1], {KA['Wv']}
        s_lshl_b32 s38, s2, 12
        v_lshlrev_b32 v7, 4, v0
        v_add_u32 v7, s38, v7
        s_waitcnt lgkmcnt(0)
        """)
        for m, (lo, hi) in enumerate(((40, 41), (42, 43), (44, 45))[:PF0]):
            srd(a, 48, lo, hi, 1024 * 8192)
            for i in range(11):
                a(f"s_mov_b32 s38, {i*786432}")
                a(f"buffer_load_dwordx4 v[{120+4*(i%2)}:{123+4*(i%2)}], v7, s[48:51], s38 offen")
    a("s_waitcnt vmcnt(0)")
    for i in range(8):
        a(f"v_lshlrev_b32 v{16+2*i}, 16, v{8+i}")
        a(f"v_and_b32 v{17+2*i}, 0xffff0000, v{8+i}")
    for i in range(16):
        r = 16 + i
        a(f"v_mul_f32 v110, 0xbfb8aa3b, v{r}")
        a("v_exp_f32 v110, v110")
        a("s_nop 0")
        a("v_add_f32 v110, 1.0, v110")
        a("v_rcp_f32 v110, v110")
        a("s_nop 0")
        a(f"v_mul_f32 v{r}, v{r}, v110")
        rnd_bf16(a, r)
    for e in range(8):
        a(f"v_mov_b32 v{112+e}, 0")
    for i in range(16):
        for p in range(4):
            w = 32 + 4 * i + p
            a(f"v_lshlrev_b32 v110, 16, v{w}")
            a(f"v_and_b32 v111, 0xffff0000, v{w}")
            a(f"v_fmac_f32 v{112+2*p}, v110, v{16+i}")
            a(f"v_fmac_f32 v{113+2*p}, v111, v{16+i}")
    a("""
    v_lshlrev_b32 v3, 5, v0
    ds_write_b128 v3, v[112:115]
    ds_write_b128 v3, v[116:119] offset:16
    s_waitcnt lgkmcnt(0)
    s_barrier
    v_cmp_gt_u32 vcc, 32, v0
    s_and_saveexec_b64 s[40:41], vcc
    """)
    fin = a.lab("mod_fin")
    a(f"s_cbranch_execz {fin}")
    a("v_lshlrev_b32 v3, 2, v0")
    a("v_mov_b32 v5, 0")
    for blk in range(4):
        for i in range(16):
            a(f"ds_read_b32 v{32+i}, v3 offset:{(blk*16+i)*128}")
        a("s_waitcnt lgkmcnt(0)")
        for i in range(16):
            a(f"v_add_f32 v5, v5, v{32+i}")
    rnd_bf16(a, 5)
    a(f"""
    s_lshl_b32 s38, s2, 7
    buffer_store_dword v5, v3, s[16:19], s38 offen
    {fin}:
    s_mov_b64 exec, s[40:41]
    {done}:
    s_endpgm
    """)
    return name, kd(name, 128), "grid=(192,1,1) block=(256,1,1) lds=8192"


def gen_ln(a, idx):
    name = f"k{1 if idx == 0 else 6}_ln_kernel"
    kernel_header(a, name)
    done = a.lab("ln_done")
    a(f"""
    s_cmp_ge_u32 s2, 512
    s_cbranch_scc1 {done}
    s_load_dwordx2 s[4:5], s[0:1], {KA['x']}
    s_load_dwordx2 s[20:21], s[0:1], {KA['ws']}
    v_lshrrev_b32 v1, 6, v0
    v_and_b32 v2, 63, v0
    s_waitcnt lgkmcnt(0)
    """)
    if idx == 0:
        srd(a, 8, 4, 5, 2048 * 2048)
    else:
        srd(a, 8, 20, 21, 2048 * 2048, WS_X1)
    srd(a, 12, 20, 21, 2048 * 2048, WS_H1 if idx == 0 else WS_H2)
    srd(a, 16, 20, 21, 6144 * 4, WS_MOD)
    if idx == 0:
        a("""
        s_lshl_b32 s25, s2, 12
        v_lshlrev_b32 v68, 4, v0
        v_add_u32 v68, s25, v68
        """)
    if idx == 0 and not os.environ.get("NOPF"):
        a(f"""
        s_load_dwordx4 s[40:43], s[0:1], {KA['Wq']}
        s_load_dwordx2 s[44:45], s[0:1], {KA['Wv']}
        s_waitcnt lgkmcnt(0)
        """)
        for m, (lo, hi) in enumerate(((40, 41), (42, 43), (44, 45))[int(os.environ.get("PF0", "2")):]):
            srd(a, 48, lo, hi, 1024 * 8192)
            for i in range(4):
                a(f"s_mov_b32 s25, {i*2097152}")
                a(f"buffer_load_dwordx4 v[{72+4*((m*4+i)%4)}:{75+4*((m*4+i)%4)}], v68, s[48:51], s25 offen")
    sh_off = (0 if idx == 0 else 3) * 4096
    sc_off = sh_off + 4096
    a(f"""
    s_lshl_b32 s22, s2, 13
    v_lshlrev_b32 v3, 11, v1
    v_lshlrev_b32 v4, 4, v2
    v_add_u32 v3, v3, v4
    buffer_load_dwordx4 v[8:11], v3, s[8:11], s22 offen
    buffer_load_dwordx4 v[12:15], v3, s[8:11], s22 offen offset:1024
    v_lshlrev_b32 v5, 5, v2
    """)
    a(f"s_mov_b32 s23, {sh_off}")
    a(f"s_mov_b32 s24, {sc_off}")
    for half in range(2):
        for q in range(2):
            o = half * 2048 + q * 16
            a(f"buffer_load_dwordx4 v[{32+half*8+q*4}:{35+half*8+q*4}], v5, s[16:19], s23 offen offset:{o}")
            a(f"buffer_load_dwordx4 v[{48+half*8+q*4}:{51+half*8+q*4}], v5, s[16:19], s24 offen offset:{o}")
    a("s_waitcnt vmcnt(8)")
    for i in range(8):
        a(f"v_lshlrev_b32 v{16+2*i}, 16, v{8+i}")
        a(f"v_and_b32 v{17+2*i}, 0xffff0000, v{8+i}")
    a("v_add_f32 v6, v16, v17")
    for i in range(2, 16):
        a(f"v_add_f32 v6, v6, v{16+i}")
    wave_sum_to_sgpr(a, 6, 26)
    a("""
    v_mov_b32 v7, s26
    v_mul_f32 v7, 0x3a800000, v7
    """)
    a("v_mov_b32 v6, 0")
    for i in range(16):
        a(f"v_sub_f32 v64, v{16+i}, v7")
        a("v_fmac_f32 v6, v64, v64")
    wave_sum_to_sgpr(a, 6, 27)
    a("""
    v_mov_b32 v6, s27
    v_mul_f32 v6, 0x3a800000, v6
    """)
    rnd_bf16(a, 6)
    rnd_bf16(a, 7)
    a("v_add_f32 v6, 0x3727c5ac, v6")
    rnd_bf16(a, 6)
    a("v_sqrt_f32 v6, v6")
    a("s_nop 0")
    rnd_bf16(a, 6)
    a("v_rcp_f32 v6, v6")
    a("s_waitcnt vmcnt(0)")
    for i in range(16):
        r = 16 + i
        a(f"v_sub_f32 v{r}, v{r}, v7")
        rnd_bf16(a, r)
        a(f"v_mul_f32 v{r}, v{r}, v6")
        rnd_bf16(a, r)
        a(f"v_add_f32 v64, 1.0, v{48+i}")
        rnd_bf16(a, 64)
        a(f"v_mul_f32 v{r}, v{r}, v64")
        rnd_bf16(a, r)
        a(f"v_add_f32 v{r}, v{r}, v{32+i}")
    for i in range(8):
        a(f"v_cvt_pk_bf16_f32 v{8+i}, v{16+2*i}, v{17+2*i}")
    a(f"""
    buffer_store_dwordx4 v[8:11], v3, s[12:15], s22 offen
    buffer_store_dwordx4 v[12:15], v3, s[12:15], s22 offen offset:1024
    {done}:
    s_endpgm
    """)
    return name, kd(name, 88), "grid=(512,1,1) block=(256,1,1) lds=0"


def gen_gemm(a, kind):
    cfg = {
        'qkv': dict(K=1024, N=12288, BN=128, lda=2048, ldb=8192, ldc=24576, idx=2),
        'wo': dict(K=4096, N=1024, BN=64, lda=8192, ldb=2048, ldc=2048, idx=5),
        'ffn1': dict(K=1024, N=3584, BN=128, lda=2048, ldb=7168, ldc=7168, idx=7),
        'ffn2': dict(K=3584, N=1024, BN=64, lda=7168, ldb=2048, ldc=2048, idx=8),
    }[kind]
    K, N, BN, lda, ldb, ldc = (cfg[k] for k in ('K', 'N', 'BN', 'lda', 'ldb', 'ldc'))
    name = f"k{cfg['idx']}_{kind}_kernel"
    NS = 4
    BK = 32
    NT = N // BN
    nwg = 16 * NT
    KT = K // BK
    TN = BN // 64
    BROW = BN * 2
    AST = 128 * BK * 2
    BST = BK * BROW
    STAGE = AST + BST
    nA = 2
    nB = BST // 4096
    NL = nA + nB
    rows_per_instr = 1024 // BROW
    kernel_header(a, name)
    done = a.lab("g_done")
    a(f"""
    s_cmp_ge_u32 s2, {nwg}
    s_cbranch_scc1 {done}
    s_load_dwordx2 s[20:21], s[0:1], {KA['ws']}
    s_and_b32 s42, s2, 7
    s_lshr_b32 s43, s2, 3
    """)
    if kind == 'qkv':
        a("""
        s_and_b32 s40, s43, 15
        s_lshr_b32 s41, s43, 4
        s_lshl_b32 s41, s41, 3
        s_add_u32 s41, s41, s42
        """)
    else:
        a("""
        s_and_b32 s40, s43, 1
        s_lshl_b32 s42, s42, 1
        s_add_u32 s40, s40, s42
        s_lshr_b32 s41, s43, 1
        """)
    if kind == 'qkv':
        a(f"""
        s_lshr_b32 s42, s41, 5
        s_lshl_b32 s42, s42, 3
        s_add_u32 s42, s42, {KA['Wq']}
        s_load_dwordx2 s[6:7], s[0:1], s42
        s_and_b32 s43, s41, 31
        """)
    else:
        bw = {'wo': 'Wo', 'ffn1': 'w1', 'ffn2': 'w2'}[kind]
        a(f"s_load_dwordx2 s[6:7], s[0:1], {KA[bw]}")
        a("s_mov_b32 s43, s41")
    if kind == 'wo':
        a(f"s_load_dwordx2 s[4:5], s[0:1], {KA['x']}")
    if kind == 'ffn1':
        a(f"s_load_dwordx2 s[4:5], s[0:1], {KA['b1']}")
    if kind == 'ffn2':
        a(f"s_load_dwordx2 s[4:5], s[0:1], {KA['b2']}")
        a(f"s_load_dwordx2 s[22:23], s[0:1], {KA['out']}")
    a("""
    v_and_b32 v1, 63, v0
    v_lshrrev_b32 v2, 6, v0
    s_nop 0
    v_readfirstlane_b32 s44, v2
    s_waitcnt lgkmcnt(0)
    """)
    a_off = {'qkv': WS_H1, 'wo': WS_OX, 'ffn1': WS_H2, 'ffn2': WS_F}[kind]
    srd(a, 8, 20, 21, 2048 * lda, a_off)
    bsize = {'qkv': 1024 * 8192, 'wo': 4096 * 2048, 'ffn1': 1024 * 7168, 'ffn2': 3584 * 2048}[kind]
    srd(a, 12, 6, 7, bsize)
    if kind == 'qkv':
        srd(a, 16, 20, 21, 2048 * ldc, WS_QKV)
    elif kind == 'wo':
        srd(a, 16, 20, 21, 2048 * ldc, WS_X1)
    elif kind == 'ffn1':
        srd(a, 16, 20, 21, 2048 * ldc, WS_F)
    else:
        srd(a, 16, 22, 23, 2048 * ldc)
    a(f"""
    v_lshrrev_b32 v3, 2, v1
    s_lshl_b32 s45, s44, 5
    v_add_u32 v3, s45, v3
    v_and_b32 v4, 3, v1
    s_lshl_b32 s46, s40, 7
    s_mov_b32 s47, {lda}
    """)
    for i in range(nA):
        a(f"""
        v_add_u32 v5, {16*i}, v3
        v_lshrrev_b32 v6, 2, v5
        v_and_b32 v6, 3, v6
        v_xor_b32 v6, v6, v4
        v_lshlrev_b32 v6, 4, v6
        v_add_u32 v5, s46, v5
        v_mul_lo_u32 v5, v5, s47
        v_add_u32 v{10+i}, v5, v6
        """)
    lpr = BROW // 16
    sh = {16: 4, 8: 3}[lpr]
    a(f"""
    v_lshrrev_b32 v3, {sh}, v1
    s_mul_i32 s45, s44, {rows_per_instr*nB}
    v_add_u32 v3, s45, v3
    v_and_b32 v4, {lpr-1}, v1
    s_lshl_b32 s46, s43, {BROW.bit_length()-1}
    s_mov_b32 s47, {ldb}
    """)
    for i in range(nB):
        a(f"v_add_u32 v5, {rows_per_instr*i}, v3")
        if BN == 128:
            a("v_and_b32 v6, 3, v5")
            a("v_lshlrev_b32 v6, 2, v6")
        else:
            a("v_and_b32 v6, 2, v5")
            a("v_lshlrev_b32 v6, 1, v6")
        a(f"""
        v_xor_b32 v6, v6, v4
        v_lshlrev_b32 v6, 4, v6
        v_mul_lo_u32 v5, v5, s47
        v_add_u32 v5, s46, v5
        v_add_u32 v{14+i}, v5, v6
        """)
    a("""
    s_lshr_b32 s48, s44, 1
    s_and_b32 s49, s44, 1
    v_and_b32 v3, 31, v1
    s_lshl_b32 s45, s48, 6
    v_add_u32 v3, s45, v3
    v_lshrrev_b32 v4, 2, v3
    v_and_b32 v4, 3, v4
    v_lshrrev_b32 v5, 5, v1
    v_lshlrev_b32 v3, 6, v3
    """)
    for ks in range(2):
        a(f"""
        v_add_u32 v6, {2*ks}, v5
        v_xor_b32 v6, v6, v4
        v_lshlrev_b32 v6, 4, v6
        v_add_u32 v{18+ks}, v3, v6
        """)
    a(f"""
    v_lshrrev_b32 v3, 5, v1
    v_lshlrev_b32 v3, 3, v3
    v_bfe_u32 v4, v1, 2, 2
    v_add_u32 v3, v3, v4
    v_bfe_u32 v5, v1, 4, 1
    v_lshlrev_b32 v5, 4, v5
    v_and_b32 v6, 3, v1
    v_lshlrev_b32 v6, 2, v6
    v_add_u32 v5, v5, v6
    s_mul_i32 s45, s49, {BN//2}
    v_add_u32 v5, s45, v5
    """)
    if BN == 128:
        a("v_lshlrev_b32 v7, 2, v4")
    else:
        a("v_and_b32 v7, 2, v4")
        a("v_lshlrev_b32 v7, 1, v7")
    a(f"v_mul_u32_u24 v3, {BROW}, v3")
    for tn in range(TN):
        a(f"""
        v_add_u32 v6, {32*tn}, v5
        v_lshrrev_b32 v8, 3, v6
        v_xor_b32 v8, v8, v7
        v_lshlrev_b32 v8, 4, v8
        v_and_b32 v6, 4, v6
        v_lshlrev_b32 v6, 1, v6
        v_add_u32 v8, v8, v6
        v_add_u32 v{22+tn}, v3, v8
        """)
    ACC = 64
    nacc = 2 * TN * 16
    for r in range(nacc):
        a(f"v_mov_b32 v{ACC+r}, 0")
    FR = 26
    fsz = 8 + 4 * TN

    def fa(s, tm):
        return FR + s * fsz + tm * 4

    def fb(s, tn):
        return FR + s * fsz + 8 + tn * 4

    a(f"""
    s_mov_b32 s50, 0
    s_mov_b32 s51, 0
    s_lshl_b32 s52, s44, 11
    s_mul_i32 s53, s44, {nB*1024}
    s_add_u32 s53, s53, {AST}
    """)

    def dma(stage):
        for i in range(nA):
            a(f"s_add_u32 m0, s52, {stage*STAGE + 1024*i}")
            a("s_nop 0")
            a(f"buffer_load_dwordx4 v{10+i}, s[8:11], s50 offen lds")
        for i in range(nB):
            a(f"s_add_u32 m0, s53, {stage*STAGE + 1024*i}")
            a("s_nop 0")
            a(f"buffer_load_dwordx4 v{14+i}, s[12:15], s51 offen lds")
        a(f"s_add_u32 s50, s50, {BK*2}")
        a(f"s_add_u32 s51, s51, {BK*ldb}")

    def reads(stage, ks, s):
        for tm in range(2):
            a(f"ds_read_b128 v[{fa(s,tm)}:{fa(s,tm)+3}], v{18+ks} offset:{stage*STAGE + tm*2048}")
        for tn in range(TN):
            o = stage * STAGE + AST + ks * 16 * BROW
            a(f"ds_read_b64_tr_b16 v[{fb(s,tn)}:{fb(s,tn)+1}], v{22+tn} offset:{o}")
            a(f"ds_read_b64_tr_b16 v[{fb(s,tn)+2}:{fb(s,tn)+3}], v{22+tn} offset:{o + 4*BROW}")

    def mfmas(s):
        for tm in range(2):
            for tn in range(TN):
                c = ACC + (tm * TN + tn) * 16
                a(f"v_mfma_f32_32x32x16_bf16 v[{c}:{c+15}], v[{fb(s,tn)}:{fb(s,tn)+3}], v[{fa(s,tm)}:{fa(s,tm)+3}], v[{c}:{c+15}]")

    nrd = 2 + 2 * TN
    for st in range(NS - 1):
        dma(st)
    loop = a.lab("g_loop")
    a("s_mov_b32 s54, 0")
    a(f"{loop}:")
    for st in range(NS):
        a(f"s_waitcnt vmcnt({(NS-2)*NL})")
        a("s_barrier")
        if not (os.environ.get("GX") == "nord" and kind == 'qkv'):
            reads(st, 0, 0)
            reads(st, 1, 1)
        if not (os.environ.get("GX") == "nodma" and kind == 'qkv'):
            dma((st + NS - 1) % NS)
        a(f"s_waitcnt lgkmcnt({nrd})")
        mfmas(0)
        a("s_waitcnt lgkmcnt(0)")
        mfmas(1)
    a(f"""
    s_add_u32 s54, s54, {NS}
    s_cmp_lt_u32 s54, {KT}
    s_cbranch_scc1 {loop}
    s_nop 15
    s_waitcnt vmcnt(0)
    """)
    a(f"""
    v_and_b32 v3, 31, v1
    s_lshl_b32 s45, s40, 7
    s_lshl_b32 s46, s48, 6
    s_add_u32 s45, s45, s46
    v_add_u32 v3, s45, v3
    v_lshrrev_b32 v4, 5, v1
    v_lshlrev_b32 v4, 2, v4
    s_mul_i32 s45, s41, {BN}
    s_mul_i32 s46, s49, {BN//2}
    s_add_u32 s45, s45, s46
    v_add_u32 v4, s45, v4
    s_mov_b32 s47, {ldc}
    v_mul_lo_u32 v5, v3, s47
    v_lshlrev_b32 v6, 1, v4
    v_add_u32 v5, v5, v6
    v_lshrrev_b32 v61, 5, v1
    v_lshlrev_b32 v61, 3, v61
    v_add_u32 v61, v61, v5
    """)
    if kind in ('wo', 'ffn2'):
        srd(a, 24, 20, 21, 6144 * 4, WS_MOD)
        gate_off = (2 if kind == 'wo' else 5) * 4096
        a(f"s_mov_b32 s55, {gate_off}")
        a("v_lshlrev_b32 v7, 2, v4")
        if kind == 'wo':
            srd(a, 28, 4, 5, 2048 * 2048)
        else:
            srd(a, 28, 20, 21, 2048 * 2048, WS_X1)
            srd(a, 32, 4, 5, 2048)
    if kind == 'ffn1':
        srd(a, 32, 4, 5, 7168)
    T = 26
    for tn in range(TN):
        if kind in ('wo', 'ffn2'):
            for rr in range(4):
                a(f"buffer_load_dwordx4 v[{T+4*rr}:{T+4*rr+3}], v7, s[24:27], s55 offen offset:{(tn*32+8*rr)*4}")
        if kind in ('ffn1', 'ffn2'):
            a("v_lshlrev_b32 v8, 1, v4")
            for rr in range(4):
                a(f"buffer_load_dwordx2 v[{T+16+2*rr}:{T+17+2*rr}], v8, s[32:35], 0 offen offset:{(tn*32+8*rr)*2}")
        for tm in range(2):
            c = ACC + (tm * TN + tn) * 16
            if kind in ('wo', 'ffn2'):
                a(f"v_add_u32 v9, {tm*32*ldc}, v5")
                for rr in range(4):
                    a(f"buffer_load_dwordx2 v[{T+24+2*rr}:{T+25+2*rr}], v9, s[28:31], 0 offen offset:{(tn*32+8*rr)*2}")
            a("s_waitcnt vmcnt(0)")
            for rr in range(4):
                for j in range(4):
                    r = c + 4 * rr + j
                    if kind == 'qkv':
                        continue
                    rnd_bf16(a, r)
                    if kind in ('ffn1', 'ffn2'):
                        b = T + 16 + 2 * rr + (j >> 1)
                        if j & 1:
                            a(f"v_and_b32 v60, 0xffff0000, v{b}")
                        else:
                            a(f"v_lshlrev_b32 v60, 16, v{b}")
                        a(f"v_add_f32 v{r}, v{r}, v60")
                        rnd_bf16(a, r)
                    if kind == 'ffn1':
                        a(f"v_mul_f32 v60, v{r}, v{r}")
                        a(f"v_mul_f32 v60, 0x3d372713, v60")
                        a("v_add_f32 v60, 1.0, v60")
                        a(f"v_mul_f32 v60, v60, v{r}")
                        a("v_mul_f32 v60, 0xc0135761, v60")
                        a("v_exp_f32 v60, v60")
                        a("s_nop 0")
                        a("v_add_f32 v60, 1.0, v60")
                        a("v_rcp_f32 v60, v60")
                        a("s_nop 0")
                        a(f"v_mul_f32 v{r}, v{r}, v60")
                    if kind in ('wo', 'ffn2'):
                        a(f"v_mul_f32 v{r}, v{r}, v{T+4*rr+j}")
                        rnd_bf16(a, r)
                        xr = T + 24 + 2 * rr + (j >> 1)
                        if j & 1:
                            a(f"v_and_b32 v60, 0xffff0000, v{xr}")
                        else:
                            a(f"v_lshlrev_b32 v60, 16, v{xr}")
                        a(f"v_add_f32 v{r}, v{r}, v60")
                dst = c + 4 * (rr & ~1) + 2 * (rr & 1)
                a(f"v_cvt_pk_bf16_f32 v{dst}, v{c+4*rr}, v{c+4*rr+1}")
                a(f"v_cvt_pk_bf16_f32 v{dst+1}, v{c+4*rr+2}, v{c+4*rr+3}")
            if tm == 1:
                a(f"v_add_u32 v9, {32*ldc}, v61")
            else:
                a("v_mov_b32 v9, v61")
            a("s_nop 0")
            for pr in range(2):
                b = c + 8 * pr
                a(f"v_permlane32_swap_b32 v{b}, v{b+2}")
                a(f"v_permlane32_swap_b32 v{b+1}, v{b+3}")
            for pr in range(2):
                b = c + 8 * pr
                a(f"buffer_store_dwordx4 v[{b}:{b+3}], v9, s[16:19], 0 offen offset:{(tn*32+16*pr)*2}")
    a(f"""
    {done}:
    s_endpgm
    """)
    nv = ACC + nacc
    return name, kd(name, nv), f"grid=({nwg},1,1) block=(256,1,1) lds={NS*STAGE}"


def gen_xattn(a):
    name = "k4_xattn_kernel"
    kernel_header(a, name)
    done = a.lab("x_done")
    LROW = 272
    WLDS = 48 * LROW
    a(f"""
    s_cmp_ge_u32 s2, 512
    s_cbranch_scc1 {done}
    s_load_dwordx2 s[20:21], s[0:1], {KA['ws']}
    v_and_b32 v1, 63, v0
    v_lshrrev_b32 v2, 6, v0
    s_nop 0
    v_readfirstlane_b32 s44, v2
    s_lshl_b32 s40, s2, 2
    s_add_u32 s40, s40, s44
    s_lshr_b32 s41, s40, 5
    s_and_b32 s42, s40, 31
    s_waitcnt lgkmcnt(0)
    """)
    srd(a, 8, 20, 21, 2048 * 24576, WS_QKV)
    srd(a, 12, 20, 21, 0xC00000, 0x1000000)
    srd(a, 16, 20, 21, 2048 * 8192, WS_OX)
    a(f"""
    s_mul_i32 s45, s41, {32*24576}
    s_lshl_b32 s46, s42, 8
    s_add_u32 s45, s45, s46
    s_lshl_b32 s47, s41, 17
    s_lshl_b32 s46, s42, 12
    s_add_u32 s47, s47, s46
    """)
    a(f"""
    v_and_b32 v3, 15, v1
    s_mov_b32 s46, 24576
    v_mul_lo_u32 v3, v3, s46
    v_lshrrev_b32 v4, 4, v1
    v_lshlrev_b32 v4, 4, v4
    v_add_u32 v3, v3, v4
    v_add_u32 v5, {16*24576}, v3
    v_lshlrev_b32 v6, 4, v1
    s_add_u32 s48, s45, 8192
    s_add_u32 s49, s45, 16384
    """)
    Q = 16
    Kf = 48
    for qt, vv in enumerate((3, 5)):
        for ks in range(4):
            r = Q + (qt * 4 + ks) * 4
            a(f"buffer_load_dwordx4 v[{r}:{r+3}], v{vv}, s[8:11], s45 offen offset:{64*ks}")
    for kt, vv in enumerate((3, 5)):
        for ks in range(4):
            r = Kf + (kt * 4 + ks) * 4
            a(f"buffer_load_dwordx4 v[{r}:{r+3}], v{vv}, s[8:11], s48 offen offset:{64*ks}")
    for ks in range(4):
        r = Kf + (8 + ks) * 4
        a(f"buffer_load_dwordx4 v[{r}:{r+3}], v6, s[12:15], s47 offen offset:{1024*ks}")
    a(f"""
    v_lshrrev_b32 v7, 4, v1
    v_mul_lo_u32 v8, v7, s46
    v_and_b32 v9, 15, v1
    v_lshlrev_b32 v9, 4, v9
    v_add_u32 v8, v8, v9
    v_mul_u32_u24 v10, {LROW}, v7
    v_add_u32 v10, v10, v9
    s_mul_i32 s50, s44, {WLDS}
    v_add_u32 v10, s50, v10
    v_lshlrev_b32 v11, 3, v1
    s_lshr_b32 s51, s47, 1
    s_add_u32 s51, s51, 0x800000
    """)
    VS = 96
    for i in range(8):
        a(f"s_add_u32 s52, s49, {i*4*24576}")
        a(f"buffer_load_dwordx4 v[{VS+4*i}:{VS+4*i+3}], v8, s[8:11], s52 offen")
    for i in range(4):
        a(f"buffer_load_dwordx2 v[{160+2*i}:{161+2*i}], v11, s[12:15], s51 offen offset:{512*i}")
    a("s_waitcnt vmcnt(0)")
    for i in range(8):
        a(f"ds_write_b128 v10, v[{VS+4*i}:{VS+4*i+3}] offset:{4*i*LROW}")
    S = 96
    for r in range(24):
        a(f"v_mov_b32 v{S+r}, 0")
    a("s_nop 1")
    pairs = [(0, 0), (0, 1), (1, 1), (2, 0), (2, 1)]
    for ks in range(4):
        for kt, qt in pairs:
            c = S + (kt * 2 + qt) * 4
            ka = Kf + (kt * 4 + ks) * 4
            qa = Q + (qt * 4 + ks) * 4
            a(f"v_mfma_f32_16x16x32_bf16 v[{c}:{c+3}], v[{ka}:{ka+3}], v[{qa}:{qa+3}], v[{c}:{c+3}]")
    a(f"""
    s_waitcnt lgkmcnt(0)
    v_lshrrev_b32 v12, 4, v1
    v_lshlrev_b32 v12, 2, v12
    v_and_b32 v13, 15, v1
    v_mov_b32 v14, 0xff800000
    v_cmp_le_u32 s[52:53], 32, v1
    v_xor_b32 v15, 16, v1
    v_lshlrev_b32 v15, 2, v15
    v_xor_b32 v2, 32, v1
    v_lshlrev_b32 v2, 2, v2
    s_nop 4
    """)
    for r in range(4):
        a(f"v_add_u32 v120, {r}, v12")
        a("v_cmp_gt_u32 vcc, v120, v13")
        a("s_nop 1")
        for t in (0, 3):
            c = S + t * 4 + r
            a(f"v_cndmask_b32 v{c}, v{c}, v14, vcc")
    for qt in range(2):
        c = S + (4 + qt) * 4
        a(f"v_permlane32_swap_b32 v{c}, v{c+2}")
        a(f"v_permlane32_swap_b32 v{c+1}, v{c+3}")
        a(f"v_pk_add_f32 v[{c}:{c+1}], v[{c}:{c+1}], v[{c+2}:{c+3}]")
    a(f"""
    v_lshrrev_b32 v12, 4, v1
    v_lshlrev_b32 v12, 2, v12
    v_bfe_u32 v13, v1, 2, 2
    v_add_u32 v12, v12, v13
    v_mul_u32_u24 v12, {LROW}, v12
    v_and_b32 v13, 3, v1
    v_lshlrev_b32 v13, 3, v13
    v_add_u32 v12, v12, v13
    v_add_u32 v12, s50, v12
    """)
    for dt in range(8):
        for kt in range(2):
            r = 16 + (dt * 3 + kt) * 2
            a(f"ds_read_b64_tr_b16 v[{r}:{r+1}], v12 offset:{kt*16*LROW + 32*dt}")
    a("s_mov_b32 s54, 0x3e0293ee")
    P = 64
    for qt in range(2):
        tiles = [(0, 0), (2, 0)] if qt == 0 else [(0, 1), (1, 1), (2, 1)]
        regs = [S + (kt * 2 + q) * 4 + r for kt, q in tiles for r in range(4 if kt < 2 else 2)]
        a(f"v_max_f32 v120, v{regs[0]}, v{regs[1]}")
        for i in range(2, len(regs), 2):
            a(f"v_max3_f32 v120, v120, v{regs[i]}, v{regs[i+1]}")
        a("""
        ds_bpermute_b32 v121, v15, v120
        s_waitcnt lgkmcnt(0)
        v_max_f32 v120, v120, v121
        ds_bpermute_b32 v121, v2, v120
        s_waitcnt lgkmcnt(0)
        v_max_f32 v120, v120, v121
        v_mul_f32 v120, s54, v120
        """)
        for r in regs:
            a(f"v_fma_f32 v{r}, v{r}, s54, -v120")
            a(f"v_exp_f32 v{r}, v{r}")
        a("s_nop 0")
        a(f"v_add_f32 v121, v{regs[0]}, v{regs[1]}")
        for r in regs[2:]:
            a(f"v_add_f32 v121, v121, v{r}")
        a("""
        ds_bpermute_b32 v122, v15, v121
        s_waitcnt lgkmcnt(0)
        v_add_f32 v121, v121, v122
        ds_bpermute_b32 v122, v2, v121
        s_waitcnt lgkmcnt(0)
        v_add_f32 v121, v121, v122
        v_rcp_f32 v121, v121
        s_nop 0
        """)
        for r in regs:
            a(f"v_mul_f32 v{r}, v{r}, v121")
        for kt, q in tiles:
            c = S + (kt * 2 + q) * 4
            p = P + (q * 4 + kt) * 2
            a(f"v_cvt_pk_bf16_f32 v{p}, v{c}, v{c+1}")
            if kt < 2:
                a(f"v_cvt_pk_bf16_f32 v{p+1}, v{c+2}, v{c+3}")
            else:
                a(f"v_mov_b32 v{p+1}, 0")
                a(f"v_mov_b32 v{p+2}, 0")
                a(f"v_cvt_pk_bf16_f32 v{p+3}, v{c}, v{c+1}")
    O = 96
    for r in range(64):
        a(f"v_mov_b32 v{O+r}, 0")
    a("s_nop 1")
    for qt in range(2):
        kts = (0, 2) if qt == 0 else (0, 1, 2)
        for kt in kts:
            for dt in range(8):
                c = O + (qt * 8 + dt) * 4
                v = 16 + (dt * 3 + kt) * 2 if kt < 2 else 160 + 2 * (dt // 2)
                p = P + (qt * 4 + kt) * 2 + (2 * (dt % 2) if kt == 2 else 0)
                a(f"v_mfma_f32_16x16x16_bf16 v[{c}:{c+3}], v[{v}:{v+1}], v[{p}:{p+1}], v[{c}:{c+3}]")
    a(f"""
    v_and_b32 v3, 15, v1
    v_lshlrev_b32 v3, 13, v3
    v_lshrrev_b32 v4, 4, v1
    v_lshlrev_b32 v4, 3, v4
    v_add_u32 v3, v3, v4
    s_lshl_b32 s45, s41, 18
    s_lshl_b32 s46, s42, 8
    s_add_u32 s45, s45, s46
    s_add_u32 s46, s45, {16*8192}
    s_nop 7
    """)
    for qt in range(2):
        for dt in range(8):
            c = O + (qt * 8 + dt) * 4
            a(f"v_cvt_pk_bf16_f32 v{c}, v{c}, v{c+1}")
            a(f"v_cvt_pk_bf16_f32 v{c+1}, v{c+2}, v{c+3}")
            a(f"buffer_store_dwordx2 v[{c}:{c+1}], v3, s[16:19], s{45+qt} offen offset:{32*dt}")
    a(f"""
    {done}:
    s_endpgm
    """)
    return name, kd(name, 176), f"grid=(512,1,1) block=(256,1,1) lds={4*WLDS}"


def main():
    import importlib; gen_chain2 = importlib.import_module(os.environ.get("CHAIN", "chain4")).gen_chain2
    hdr = open(os.path.join(os.path.dirname(__file__), "header.txt")).read()
    a = Asm()
    kernels = [gen_mod(a), gen_ln(a, 0), gen_gemm(a, 'qkv'), gen_chain2(a), gen_xattn(a), gen_gemm(a, 'wo'),
               gen_ln(a, 1), gen_gemm(a, 'ffn1'), gen_gemm(a, 'ffn2')]
    only = os.environ.get("GEN_ONLY")
    launch = kernels
    if only:
        launch = kernels[:int(only)]
    out = hdr
    for n, _, l in launch:
        out += f"; @launch kernel={n} {l}\n"
    out += '.amdgcn_target "amdgcn-amd-amdhsa--gfx950"\n.text\n'
    out += a.text()
    out += '.section .rodata,"a"\n'
    for _, k, _ in kernels:
        out += k
    dst = sys.argv[1] if len(sys.argv) > 1 else f"/code/{NAME}.s"
    open(dst, "w").write(out)


if __name__ == "__main__":
    main()
```

```python
import sys, os

NAME = "adaLN_cond__memory_aug_recurrent_mem_tr__dense_activation_gelu__prompt"

WS_MOD = 0x0000000
WS_MEMB = 0x7000000
WS_RED = 0x7800000
WS_GRED = WS_RED + 0x200000
WS_FILL_END = WS_GRED + 0x1000000
WS_XCC = WS_FILL_END
WS_H1 = 0x0400000
WS_X1 = 0x0800000
WS_H2 = 0x0C00000
WS_MKV = 0x1000000
WS_QKV = 0x2000000
WS_OX = 0x5000000
WS_F = 0x6000000
WS_SIZE = 268435456

KA = dict(x=0, mem0=8, Wq=16, Wk=24, Wv=32, Wo=40, seg=48, Bx=56, w1=64, b1=72, w2=80, b2=88,
          c=96, wmod=104, out=112, dbg=120, ws=128)


class Asm:
    def __init__(self):
        self.l = []
        self.uid = 0

    def __call__(self, s):
        for line in s.strip().split("\n"):
            line = line.strip()
            if not line:
                continue
            if line.endswith(":"):
                self.l.append(line)
            else:
                self.l.append("    " + line)

    def lab(self, base):
        self.uid += 1
        return f"L_{base}_{self.uid}"

    def text(self):
        return "\n".join(self.l) + "\n"


def srd(a, d, base_lo, base_hi, size, off=0):
    if off:
        a(f"s_add_u32 s{d}, s{base_lo}, {off:#x}")
        a(f"s_addc_u32 s{d+1}, s{base_hi}, 0")
        a(f"s_and_b32 s{d+1}, s{d+1}, 0xffff")
    else:
        a(f"s_mov_b32 s{d}, s{base_lo}")
        a(f"s_and_b32 s{d+1}, s{base_hi}, 0xffff")
    a(f"s_mov_b32 s{d+2}, {size:#x}")
    a(f"s_mov_b32 s{d+3}, 0x00020000")


def kernel_header(a, name):
    a.l.append(f".globl {name}")
    a.l.append(".p2align 8")
    a.l.append(f".type {name},@function")
    a.l.append(f"{name}:")


def kd(name, vgpr, sgpr=102, accum=None):
    if accum is None:
        accum = (vgpr + 3) // 4 * 4
    return f""".p2align 6
.amdhsa_kernel {name}
  .amdhsa_next_free_vgpr {vgpr}
  .amdhsa_next_free_sgpr {sgpr}
  .amdhsa_accum_offset {accum}
  .amdhsa_group_segment_fixed_size 0
  .amdhsa_kernarg_size 136
  .amdhsa_user_sgpr_count 2
  .amdhsa_user_sgpr_kernarg_segment_ptr 1
  .amdhsa_system_sgpr_workgroup_id_x 1
.end_amdhsa_kernel
"""


def rnd_bf16(a, v, tmp=None):
    a(f"v_cvt_pk_bf16_f32 v{v}, v{v}, v{v}")
    a(f"v_lshlrev_b32 v{v}, 16, v{v}")


def wave_sum_to_sgpr(a, v, s):
    a("s_nop 1")
    for sh in (1, 2, 4, 8):
        a(f"v_add_f32_dpp v{v}, v{v}, v{v} row_shr:{sh} row_mask:0xf bank_mask:0xf bound_ctrl:0")
        a("s_nop 1")
    a(f"v_add_f32_dpp v{v}, v{v}, v{v} row_bcast:15 row_mask:0xa bank_mask:0xf")
    a("s_nop 1")
    a(f"v_add_f32_dpp v{v}, v{v}, v{v} row_bcast:31 row_mask:0xc bank_mask:0xf")
    a("s_nop 1")
    a(f"v_readlane_b32 s{s}, v{v}, 63")


def gen_mod(a):
    name = "k0_mod_kernel"
    kernel_header(a, name)
    done = a.lab("mod_done")
    a(f"""
    s_cmp_ge_u32 s2, 192
    s_cbranch_scc1 {done}
    s_load_dwordx2 s[4:5], s[0:1], {KA['c']}
    s_load_dwordx2 s[6:7], s[0:1], {KA['wmod']}
    s_load_dwordx2 s[20:21], s[0:1], {KA['ws']}
    s_load_dwordx2 s[22:23], s[0:1], {KA['mem0']}
    v_and_b32 v1, 3, v0
    v_lshrrev_b32 v2, 2, v0
    s_waitcnt lgkmcnt(0)
    """)
    srd(a, 8, 4, 5, 2048)
    srd(a, 12, 6, 7, 1024 * 6144 * 2)
    srd(a, 16, 20, 21, WS_SIZE)
    srd(a, 32, 22, 23, 16384)
    a("""
    v_lshlrev_b32 v3, 5, v2
    buffer_load_dwordx4 v[8:11], v3, s[8:11], 0 offen
    buffer_load_dwordx4 v[12:15], v3, s[8:11], 0 offen offset:16
    """)
    a("""
    s_mov_b32 s36, 196608
    v_mul_lo_u32 v4, v2, s36
    v_lshlrev_b32 v5, 4, v1
    v_add_u32 v4, v4, v5
    s_lshl_b32 s37, s2, 6
    """)
    for i in range(16):
        a(f"buffer_load_dwordx4 v[{32+4*i}:{35+4*i}], v4, s[12:15], s37 offen")
        if i < 15:
            a("v_add_u32 v4, 12288, v4")
    PF0 = int(os.environ.get("PF0", "2"))
    if PF0:
        a(f"""
        s_load_dwordx4 s[40:43], s[0:1], {KA['Wq']}
        s_load_dwordx2 s[44:45], s[0:1], {KA['Wv']}
        s_lshl_b32 s38, s2, 12
        v_lshlrev_b32 v7, 4, v0
        v_add_u32 v7, s38, v7
        s_waitcnt lgkmcnt(0)
        """)
        for m, (lo, hi) in enumerate(((40, 41), (42, 43), (44, 45))[:PF0]):
            srd(a, 48, lo, hi, 1024 * 8192)
            for i in range(11):
                a(f"s_mov_b32 s38, {i*786432}")
                a(f"buffer_load_dwordx4 v[{120+4*(i%2)}:{123+4*(i%2)}], v7, s[48:51], s38 offen")
    skipm = a.lab("mod_skipm")
    a(f"""
    s_cmp_ge_u32 s2, 4
    s_cbranch_scc1 {skipm}
    s_lshl_b32 s38, s2, 12
    v_lshlrev_b32 v7, 4, v0
    v_add_u32 v7, s38, v7
    buffer_load_dwordx4 v[104:107], v7, s[32:35], 0 offen
    s_waitcnt vmcnt(0)
    """)
    for rep in range(8):
        a(f"s_mov_b32 s39, {WS_MEMB + rep*0x100000:#x}")
        a("buffer_store_dwordx4 v[104:107], v7, s[16:19], s39 offen")
    a(f"""
    {skipm}:
    s_waitcnt vmcnt(0)
    """)
    for i in range(8):
        a(f"v_lshlrev_b32 v{16+2*i}, 16, v{8+i}")
        a(f"v_and_b32 v{17+2*i}, 0xffff0000, v{8+i}")
    for i in range(16):
        r = 16 + i
        a(f"v_mul_f32 v110, 0xbfb8aa3b, v{r}")
        a("v_exp_f32 v110, v110")
        a("s_nop 0")
        a("v_add_f32 v110, 1.0, v110")
        a("v_rcp_f32 v110, v110")
        a("s_nop 0")
        a(f"v_mul_f32 v{r}, v{r}, v110")
        rnd_bf16(a, r)
    for e in range(8):
        a(f"v_mov_b32 v{112+e}, 0")
    for i in range(16):
        for p in range(4):
            w = 32 + 4 * i + p
            a(f"v_lshlrev_b32 v110, 16, v{w}")
            a(f"v_and_b32 v111, 0xffff0000, v{w}")
            a(f"v_fmac_f32 v{112+2*p}, v110, v{16+i}")
            a(f"v_fmac_f32 v{113+2*p}, v111, v{16+i}")
    a("""
    v_lshlrev_b32 v3, 5, v0
    ds_write_b128 v3, v[112:115]
    ds_write_b128 v3, v[116:119] offset:16
    s_waitcnt lgkmcnt(0)
    s_barrier
    v_cmp_gt_u32 vcc, 32, v0
    s_and_saveexec_b64 s[40:41], vcc
    """)
    fin = a.lab("mod_fin")
    a(f"s_cbranch_execz {fin}")
    a("v_lshlrev_b32 v3, 2, v0")
    a("v_mov_b32 v5, 0")
    for blk in range(4):
        for i in range(16):
            a(f"ds_read_b32 v{32+i}, v3 offset:{(blk*16+i)*128}")
        a("s_waitcnt lgkmcnt(0)")
        for i in range(16):
            a(f"v_add_f32 v5, v5, v{32+i}")
    rnd_bf16(a, 5)
    a(f"""
    s_lshl_b32 s38, s2, 7
    buffer_store_dword v5, v3, s[16:19], s38 offen
    {fin}:
    s_mov_b64 exec, s[40:41]
    {done}:
    s_endpgm
    """)
    return name, kd(name, 128), "grid=(192,1,1) block=(256,1,1) lds=8192"


def gen_ln(a, idx):
    name = f"k{1 if idx == 0 else 6}_ln_kernel"
    kernel_header(a, name)
    done = a.lab("ln_done")
    a(f"""
    s_cmp_ge_u32 s2, 512
    s_cbranch_scc1 {done}
    s_load_dwordx2 s[4:5], s[0:1], {KA['x']}
    s_load_dwordx2 s[20:21], s[0:1], {KA['ws']}
    v_lshrrev_b32 v1, 6, v0
    v_and_b32 v2, 63, v0
    s_waitcnt lgkmcnt(0)
    """)
    if idx == 0:
        srd(a, 8, 4, 5, 2048 * 2048)
    else:
        srd(a, 8, 20, 21, 2048 * 2048, WS_X1)
    srd(a, 12, 20, 21, 2048 * 2048, WS_H1 if idx == 0 else WS_H2)
    srd(a, 16, 20, 21, 6144 * 4, WS_MOD)
    if idx == 0:
        srd(a, 28, 20, 21, WS_FILL_END - WS_MEMB + 4096, WS_MEMB)
        srd(a, 32, 20, 21, 64 * 32 * 6144, WS_MKV)
        a("""
        v_mov_b32 v64, -1
        v_mov_b32 v65, -1
        v_mov_b32 v66, -1
        v_mov_b32 v67, -1
        s_lshl_b32 s25, s2, 12
        v_lshlrev_b32 v68, 4, v0
        v_add_u32 v68, s25, v68
        v_and_b32 v69, 0xfffff, v68
        v_cmp_le_u32 vcc, 0x4000, v69
        s_and_saveexec_b64 s[36:37], vcc
        """)
        for i in range(4):
            a(f"s_mov_b32 s25, {i*2097152}")
            a("buffer_store_dwordx4 v[64:67], v68, s[28:31], s25 offen")
        a("s_mov_b64 exec, s[36:37]")
        for i in range(4, 14):
            a(f"s_mov_b32 s25, {i*2097152}")
            a("buffer_store_dwordx4 v[64:67], v68, s[28:31], s25 offen")
        for i in range(6):
            a(f"s_mov_b32 s25, {i*2097152}")
            a("buffer_store_dwordx4 v[64:67], v68, s[32:35], s25 offen")
    if idx == 0 and not os.environ.get("NOPF"):
        a(f"""
        s_load_dwordx4 s[40:43], s[0:1], {KA['Wq']}
        s_load_dwordx2 s[44:45], s[0:1], {KA['Wv']}
        s_waitcnt lgkmcnt(0)
        """)
        for m, (lo, hi) in enumerate(((40, 41), (42, 43), (44, 45))[int(os.environ.get("PF0", "2")):]):
            srd(a, 48, lo, hi, 1024 * 8192)
            for i in range(4):
                a(f"s_mov_b32 s25, {i*2097152}")
                a(f"buffer_load_dwordx4 v[{72+4*((m*4+i)%4)}:{75+4*((m*4+i)%4)}], v68, s[48:51], s25 offen")
    sh_off = (0 if idx == 0 else 3) * 4096
    sc_off = sh_off + 4096
    a(f"""
    s_lshl_b32 s22, s2, 13
    v_lshlrev_b32 v3, 11, v1
    v_lshlrev_b32 v4, 4, v2
    v_add_u32 v3, v3, v4
    buffer_load_dwordx4 v[8:11], v3, s[8:11], s22 offen
    buffer_load_dwordx4 v[12:15], v3, s[8:11], s22 offen offset:1024
    v_lshlrev_b32 v5, 5, v2
    """)
    a(f"s_mov_b32 s23, {sh_off}")
    a(f"s_mov_b32 s24, {sc_off}")
    for half in range(2):
        for q in range(2):
            o = half * 2048 + q * 16
            a(f"buffer_load_dwordx4 v[{32+half*8+q*4}:{35+half*8+q*4}], v5, s[16:19], s23 offen offset:{o}")
            a(f"buffer_load_dwordx4 v[{48+half*8+q*4}:{51+half*8+q*4}], v5, s[16:19], s24 offen offset:{o}")
    a("s_waitcnt vmcnt(8)")
    for i in range(8):
        a(f"v_lshlrev_b32 v{16+2*i}, 16, v{8+i}")
        a(f"v_and_b32 v{17+2*i}, 0xffff0000, v{8+i}")
    a("v_add_f32 v6, v16, v17")
    for i in range(2, 16):
        a(f"v_add_f32 v6, v6, v{16+i}")
    wave_sum_to_sgpr(a, 6, 26)
    a("""
    v_mov_b32 v7, s26
    v_mul_f32 v7, 0x3a800000, v7
    """)
    a("v_mov_b32 v6, 0")
    for i in range(16):
        a(f"v_sub_f32 v64, v{16+i}, v7")
        a("v_fmac_f32 v6, v64, v64")
    wave_sum_to_sgpr(a, 6, 27)
    a("""
    v_mov_b32 v6, s27
    v_mul_f32 v6, 0x3a800000, v6
    """)
    rnd_bf16(a, 6)
    rnd_bf16(a, 7)
    a("v_add_f32 v6, 0x3727c5ac, v6")
    rnd_bf16(a, 6)
    a("v_sqrt_f32 v6, v6")
    a("s_nop 0")
    rnd_bf16(a, 6)
    a("v_rcp_f32 v6, v6")
    a("s_waitcnt vmcnt(0)")
    for i in range(16):
        r = 16 + i
        a(f"v_sub_f32 v{r}, v{r}, v7")
        rnd_bf16(a, r)
        a(f"v_mul_f32 v{r}, v{r}, v6")
        rnd_bf16(a, r)
        a(f"v_add_f32 v64, 1.0, v{48+i}")
        rnd_bf16(a, 64)
        a(f"v_mul_f32 v{r}, v{r}, v64")
        rnd_bf16(a, r)
        a(f"v_add_f32 v{r}, v{r}, v{32+i}")
    for i in range(8):
        a(f"v_cvt_pk_bf16_f32 v{8+i}, v{16+2*i}, v{17+2*i}")
    a(f"""
    buffer_store_dwordx4 v[8:11], v3, s[12:15], s22 offen
    buffer_store_dwordx4 v[12:15], v3, s[12:15], s22 offen offset:1024
    {done}:
    s_endpgm
    """)
    return name, kd(name, 88), "grid=(512,1,1) block=(256,1,1) lds=0"


def gen_gemm(a, kind):
    cfg = {
        'qkv': dict(K=1024, N=12288, BN=128, lda=2048, ldb=8192, ldc=24576, idx=2),
        'wo': dict(K=4096, N=1024, BN=64, lda=8192, ldb=2048, ldc=2048, idx=5),
        'ffn1': dict(K=1024, N=3584, BN=128, lda=2048, ldb=7168, ldc=7168, idx=7),
        'ffn2': dict(K=3584, N=1024, BN=64, lda=7168, ldb=2048, ldc=2048, idx=8),
    }[kind]
    K, N, BN, lda, ldb, ldc = (cfg[k] for k in ('K', 'N', 'BN', 'lda', 'ldb', 'ldc'))
    name = f"k{cfg['idx']}_{kind}_kernel"
    NS = 4
    BK = 32
    NT = N // BN
    nwg = 16 * NT
    KT = K // BK
    TN = BN // 64
    BROW = BN * 2
    AST = 128 * BK * 2
    BST = BK * BROW
    STAGE = AST + BST
    nA = 2
    nB = BST // 4096
    NL = nA + nB
    rows_per_instr = 1024 // BROW
    kernel_header(a, name)
    done = a.lab("g_done")
    a(f"""
    s_cmp_ge_u32 s2, {nwg}
    s_cbranch_scc1 {done}
    s_load_dwordx2 s[20:21], s[0:1], {KA['ws']}
    s_and_b32 s42, s2, 7
    s_lshr_b32 s43, s2, 3
    """)
    if kind == 'qkv':
        a("""
        s_and_b32 s40, s43, 15
        s_lshr_b32 s41, s43, 4
        s_lshl_b32 s41, s41, 3
        s_add_u32 s41, s41, s42
        """)
    else:
        a("""
        s_and_b32 s40, s43, 1
        s_lshl_b32 s42, s42, 1
        s_add_u32 s40, s40, s42
        s_lshr_b32 s41, s43, 1
        """)
    if kind == 'qkv':
        a(f"""
        s_lshr_b32 s42, s41, 5
        s_lshl_b32 s42, s42, 3
        s_add_u32 s42, s42, {KA['Wq']}
        s_load_dwordx2 s[6:7], s[0:1], s42
        s_and_b32 s43, s41, 31
        """)
    else:
        bw = {'wo': 'Wo', 'ffn1': 'w1', 'ffn2': 'w2'}[kind]
        a(f"s_load_dwordx2 s[6:7], s[0:1], {KA[bw]}")
        a("s_mov_b32 s43, s41")
    if kind == 'wo':
        a(f"s_load_dwordx2 s[4:5], s[0:1], {KA['x']}")
    if kind == 'ffn1':
        a(f"s_load_dwordx2 s[4:5], s[0:1], {KA['b1']}")
    if kind == 'ffn2':
        a(f"s_load_dwordx2 s[4:5], s[0:1], {KA['b2']}")
        a(f"s_load_dwordx2 s[22:23], s[0:1], {KA['out']}")
    a("""
    v_and_b32 v1, 63, v0
    v_lshrrev_b32 v2, 6, v0
    s_nop 0
    v_readfirstlane_b32 s44, v2
    s_waitcnt lgkmcnt(0)
    """)
    a_off = {'qkv': WS_H1, 'wo': WS_OX, 'ffn1': WS_H2, 'ffn2': WS_F}[kind]
    srd(a, 8, 20, 21, 2048 * lda, a_off)
    bsize = {'qkv': 1024 * 8192, 'wo': 4096 * 2048, 'ffn1': 1024 * 7168, 'ffn2': 3584 * 2048}[kind]
    srd(a, 12, 6, 7, bsize)
    if kind == 'qkv':
        srd(a, 16, 20, 21, 2048 * ldc, WS_QKV)
    elif kind == 'wo':
        srd(a, 16, 20, 21, 2048 * ldc, WS_X1)
    elif kind == 'ffn1':
        srd(a, 16, 20, 21, 2048 * ldc, WS_F)
    else:
        srd(a, 16, 22, 23, 2048 * ldc)
    a(f"""
    v_lshrrev_b32 v3, 2, v1
    s_lshl_b32 s45, s44, 5
    v_add_u32 v3, s45, v3
    v_and_b32 v4, 3, v1
    s_lshl_b32 s46, s40, 7
    s_mov_b32 s47, {lda}
    """)
    for i in range(nA):
        a(f"""
        v_add_u32 v5, {16*i}, v3
        v_lshrrev_b32 v6, 2, v5
        v_and_b32 v6, 3, v6
        v_xor_b32 v6, v6, v4
        v_lshlrev_b32 v6, 4, v6
        v_add_u32 v5, s46, v5
        v_mul_lo_u32 v5, v5, s47
        v_add_u32 v{10+i}, v5, v6
        """)
    lpr = BROW // 16
    sh = {16: 4, 8: 3}[lpr]
    a(f"""
    v_lshrrev_b32 v3, {sh}, v1
    s_mul_i32 s45, s44, {rows_per_instr*nB}
    v_add_u32 v3, s45, v3
    v_and_b32 v4, {lpr-1}, v1
    s_lshl_b32 s46, s43, {BROW.bit_length()-1}
    s_mov_b32 s47, {ldb}
    """)
    for i in range(nB):
        a(f"v_add_u32 v5, {rows_per_instr*i}, v3")
        if BN == 128:
            a("v_and_b32 v6, 3, v5")
            a("v_lshlrev_b32 v6, 2, v6")
        else:
            a("v_and_b32 v6, 2, v5")
            a("v_lshlrev_b32 v6, 1, v6")
        a(f"""
        v_xor_b32 v6, v6, v4
        v_lshlrev_b32 v6, 4, v6
        v_mul_lo_u32 v5, v5, s47
        v_add_u32 v5, s46, v5
        v_add_u32 v{14+i}, v5, v6
        """)
    a("""
    s_lshr_b32 s48, s44, 1
    s_and_b32 s49, s44, 1
    v_and_b32 v3, 31, v1
    s_lshl_b32 s45, s48, 6
    v_add_u32 v3, s45, v3
    v_lshrrev_b32 v4, 2, v3
    v_and_b32 v4, 3, v4
    v_lshrrev_b32 v5, 5, v1
    v_lshlrev_b32 v3, 6, v3
    """)
    for ks in range(2):
        a(f"""
        v_add_u32 v6, {2*ks}, v5
        v_xor_b32 v6, v6, v4
        v_lshlrev_b32 v6, 4, v6
        v_add_u32 v{18+ks}, v3, v6
        """)
    a(f"""
    v_lshrrev_b32 v3, 5, v1
    v_lshlrev_b32 v3, 3, v3
    v_bfe_u32 v4, v1, 2, 2
    v_add_u32 v3, v3, v4
    v_bfe_u32 v5, v1, 4, 1
    v_lshlrev_b32 v5, 4, v5
    v_and_b32 v6, 3, v1
    v_lshlrev_b32 v6, 2, v6
    v_add_u32 v5, v5, v6
    s_mul_i32 s45, s49, {BN//2}
    v_add_u32 v5, s45, v5
    """)
    if BN == 128:
        a("v_lshlrev_b32 v7, 2, v4")
    else:
        a("v_and_b32 v7, 2, v4")
        a("v_lshlrev_b32 v7, 1, v7")
    a(f"v_mul_u32_u24 v3, {BROW}, v3")
    for tn in range(TN):
        a(f"""
        v_add_u32 v6, {32*tn}, v5
        v_lshrrev_b32 v8, 3, v6
        v_xor_b32 v8, v8, v7
        v_lshlrev_b32 v8, 4, v8
        v_and_b32 v6, 4, v6
        v_lshlrev_b32 v6, 1, v6
        v_add_u32 v8, v8, v6
        v_add_u32 v{22+tn}, v3, v8
        """)
    ACC = 64
    nacc = 2 * TN * 16
    for r in range(nacc):
        a(f"v_mov_b32 v{ACC+r}, 0")
    FR = 26
    fsz = 8 + 4 * TN

    def fa(s, tm):
        return FR + s * fsz + tm * 4

    def fb(s, tn):
        return FR + s * fsz + 8 + tn * 4

    a(f"""
    s_mov_b32 s50, 0
    s_mov_b32 s51, 0
    s_lshl_b32 s52, s44, 11
    s_mul_i32 s53, s44, {nB*1024}
    s_add_u32 s53, s53, {AST}
    """)

    def dma(stage):
        for i in range(nA):
            a(f"s_add_u32 m0, s52, {stage*STAGE + 1024*i}")
            a("s_nop 0")
            a(f"buffer_load_dwordx4 v{10+i}, s[8:11], s50 offen lds")
        for i in range(nB):
            a(f"s_add_u32 m0, s53, {stage*STAGE + 1024*i}")
            a("s_nop 0")
            a(f"buffer_load_dwordx4 v{14+i}, s[12:15], s51 offen lds")
        a(f"s_add_u32 s50, s50, {BK*2}")
        a(f"s_add_u32 s51, s51, {BK*ldb}")

    def reads(stage, ks, s):
        for tm in range(2):
            a(f"ds_read_b128 v[{fa(s,tm)}:{fa(s,tm)+3}], v{18+ks} offset:{stage*STAGE + tm*2048}")
        for tn in range(TN):
            o = stage * STAGE + AST + ks * 16 * BROW
            a(f"ds_read_b64_tr_b16 v[{fb(s,tn)}:{fb(s,tn)+1}], v{22+tn} offset:{o}")
            a(f"ds_read_b64_tr_b16 v[{fb(s,tn)+2}:{fb(s,tn)+3}], v{22+tn} offset:{o + 4*BROW}")

    def mfmas(s):
        for tm in range(2):
            for tn in range(TN):
                c = ACC + (tm * TN + tn) * 16
                a(f"v_mfma_f32_32x32x16_bf16 v[{c}:{c+15}], v[{fb(s,tn)}:{fb(s,tn)+3}], v[{fa(s,tm)}:{fa(s,tm)+3}], v[{c}:{c+15}]")

    nrd = 2 + 2 * TN
    for st in range(NS - 1):
        dma(st)
    loop = a.lab("g_loop")
    a("s_mov_b32 s54, 0")
    a(f"{loop}:")
    for st in range(NS):
        a(f"s_waitcnt vmcnt({(NS-2)*NL})")
        a("s_barrier")
        if not (os.environ.get("GX") == "nord" and kind == 'qkv'):
            reads(st, 0, 0)
            reads(st, 1, 1)
        if not (os.environ.get("GX") == "nodma" and kind == 'qkv'):
            dma((st + NS - 1) % NS)
        a(f"s_waitcnt lgkmcnt({nrd})")
        mfmas(0)
        a("s_waitcnt lgkmcnt(0)")
        mfmas(1)
    a(f"""
    s_add_u32 s54, s54, {NS}
    s_cmp_lt_u32 s54, {KT}
    s_cbranch_scc1 {loop}
    s_nop 15
    s_waitcnt vmcnt(0)
    """)
    a(f"""
    v_and_b32 v3, 31, v1
    s_lshl_b32 s45, s40, 7
    s_lshl_b32 s46, s48, 6
    s_add_u32 s45, s45, s46
    v_add_u32 v3, s45, v3
    v_lshrrev_b32 v4, 5, v1
    v_lshlrev_b32 v4, 2, v4
    s_mul_i32 s45, s41, {BN}
    s_mul_i32 s46, s49, {BN//2}
    s_add_u32 s45, s45, s46
    v_add_u32 v4, s45, v4
    s_mov_b32 s47, {ldc}
    v_mul_lo_u32 v5, v3, s47
    v_lshlrev_b32 v6, 1, v4
    v_add_u32 v5, v5, v6
    v_lshrrev_b32 v61, 5, v1
    v_lshlrev_b32 v61, 3, v61
    v_add_u32 v61, v61, v5
    """)
    if kind in ('wo', 'ffn2'):
        srd(a, 24, 20, 21, 6144 * 4, WS_MOD)
        gate_off = (2 if kind == 'wo' else 5) * 4096
        a(f"s_mov_b32 s55, {gate_off}")
        a("v_lshlrev_b32 v7, 2, v4")
        if kind == 'wo':
            srd(a, 28, 4, 5, 2048 * 2048)
        else:
            srd(a, 28, 20, 21, 2048 * 2048, WS_X1)
            srd(a, 32, 4, 5, 2048)
    if kind == 'ffn1':
        srd(a, 32, 4, 5, 7168)
    T = 26
    for tn in range(TN):
        if kind in ('wo', 'ffn2'):
            for rr in range(4):
                a(f"buffer_load_dwordx4 v[{T+4*rr}:{T+4*rr+3}], v7, s[24:27], s55 offen offset:{(tn*32+8*rr)*4}")
        if kind in ('ffn1', 'ffn2'):
            a("v_lshlrev_b32 v8, 1, v4")
            for rr in range(4):
                a(f"buffer_load_dwordx2 v[{T+16+2*rr}:{T+17+2*rr}], v8, s[32:35], 0 offen offset:{(tn*32+8*rr)*2}")
        for tm in range(2):
            c = ACC + (tm * TN + tn) * 16
            if kind in ('wo', 'ffn2'):
                a(f"v_add_u32 v9, {tm*32*ldc}, v5")
                for rr in range(4):
                    a(f"buffer_load_dwordx2 v[{T+24+2*rr}:{T+25+2*rr}], v9, s[28:31], 0 offen offset:{(tn*32+8*rr)*2}")
            a("s_waitcnt vmcnt(0)")
            for rr in range(4):
                for j in range(4):
                    r = c + 4 * rr + j
                    if kind == 'qkv':
                        continue
                    rnd_bf16(a, r)
                    if kind in ('ffn1', 'ffn2'):
                        b = T + 16 + 2 * rr + (j >> 1)
                        if j & 1:
                            a(f"v_and_b32 v60, 0xffff0000, v{b}")
                        else:
                            a(f"v_lshlrev_b32 v60, 16, v{b}")
                        a(f"v_add_f32 v{r}, v{r}, v60")
                        rnd_bf16(a, r)
                    if kind == 'ffn1':
                        a(f"v_mul_f32 v60, v{r}, v{r}")
                        a(f"v_mul_f32 v60, 0x3d372713, v60")
                        a("v_add_f32 v60, 1.0, v60")
                        a(f"v_mul_f32 v60, v60, v{r}")
                        a("v_mul_f32 v60, 0xc0135761, v60")
                        a("v_exp_f32 v60, v60")
                        a("s_nop 0")
                        a("v_add_f32 v60, 1.0, v60")
                        a("v_rcp_f32 v60, v60")
                        a("s_nop 0")
                        a(f"v_mul_f32 v{r}, v{r}, v60")
                    if kind in ('wo', 'ffn2'):
                        a(f"v_mul_f32 v{r}, v{r}, v{T+4*rr+j}")
                        rnd_bf16(a, r)
                        xr = T + 24 + 2 * rr + (j >> 1)
                        if j & 1:
                            a(f"v_and_b32 v60, 0xffff0000, v{xr}")
                        else:
                            a(f"v_lshlrev_b32 v60, 16, v{xr}")
                        a(f"v_add_f32 v{r}, v{r}, v60")
                dst = c + 4 * (rr & ~1) + 2 * (rr & 1)
                a(f"v_cvt_pk_bf16_f32 v{dst}, v{c+4*rr}, v{c+4*rr+1}")
                a(f"v_cvt_pk_bf16_f32 v{dst+1}, v{c+4*rr+2}, v{c+4*rr+3}")
            if tm == 1:
                a(f"v_add_u32 v9, {32*ldc}, v61")
            else:
                a("v_mov_b32 v9, v61")
            a("s_nop 0")
            for pr in range(2):
                b = c + 8 * pr
                a(f"v_permlane32_swap_b32 v{b}, v{b+2}")
                a(f"v_permlane32_swap_b32 v{b+1}, v{b+3}")
            for pr in range(2):
                b = c + 8 * pr
                a(f"buffer_store_dwordx4 v[{b}:{b+3}], v9, s[16:19], 0 offen offset:{(tn*32+16*pr)*2}")
    a(f"""
    {done}:
    s_endpgm
    """)
    nv = ACC + nacc
    return name, kd(name, nv), f"grid=({nwg},1,1) block=(256,1,1) lds={NS*STAGE}"


STAMP = bool(os.environ.get("STAMP"))


EXP = os.environ.get("EXP", "0")
SLQ = int(os.environ.get("SLQ", "2"))
CQ = int(os.environ.get("CQ", "0"))
AQ = int(os.environ.get("AQ", "0"))
SLG = int(os.environ.get("SLG", "0"))
SLA = int(os.environ.get("SLA", "2"))
SLB = int(os.environ.get("SLB", "1"))
SLC = int(os.environ.get("SLC", "2"))
NP = int(os.environ.get("NP", "4"))
GP = int(os.environ.get("GP", "2"))


def stamp(a, i, exp="0"):
    if STAMP and (exp == EXP or i in (0, 1)):
        a(f"s_memrealtime s[80:81]" if os.environ.get("RT") else f"s_memtime s[80:81]")
        a("s_waitcnt lgkmcnt(0)")
        a(f"s_mov_b32 s{72+i}, s80")


def ppoll(a, vaddr, soff, done_lab, base, n=4, gap=1):
    lp = a.lab("pp")
    for i in range(n):
        a(f"buffer_load_dword v{base+i}, v{vaddr}, s[12:15], {soff} offen sc1")
        if gap:
            a(f"s_sleep {gap}")
    a("s_mov_b32 s70, 0")
    a(f"{lp}:")
    for i in range(n):
        a(f"s_waitcnt vmcnt({n-1})")
        a(f"v_cmp_eq_u32 vcc, -1, v{base+i}")
        a("s_nop 1")
        a(f"s_cbranch_vccz {done_lab}")
        a(f"buffer_load_dword v{base+i}, v{vaddr}, s[12:15], {soff} offen sc1")
    a("s_add_u32 s70, s70, 1")
    a("s_cmp_lt_u32 s70, 0x100000")
    a(f"s_cbranch_scc1 {lp}")


def gen_chain(a):
    name = "k3_chain_kernel"
    kernel_header(a, name)
    done = a.lab("c_done")
    LROW = 272
    L_PART = 0
    L_QM = 12288
    L_KM = L_QM + 16 * LROW
    L_VM = L_KM + 16 * LROW
    L_KX = L_VM + 16 * LROW
    L_VX = L_KX + 32 * LROW
    L_STG = 49152
    a(f"""
    s_cmp_ge_u32 s2, 256
    s_cbranch_scc1 {done}
    s_load_dwordx4 s[4:7], s[0:1], {KA['Wq']}
    s_load_dwordx4 s[8:11], s[0:1], {KA['Wv']}
    s_load_dwordx2 s[20:21], s[0:1], {KA['ws']}
    s_and_b32 s40, s2, 31
    s_lshr_b32 s41, s2, 5
    v_and_b32 v1, 63, v0
    v_lshrrev_b32 v2, 6, v0
    s_nop 0
    v_readfirstlane_b32 s44, v2
    s_waitcnt lgkmcnt(0)
    """)
    srd(a, 24, 4, 5, 1024 * 8192)
    srd(a, 28, 6, 7, 1024 * 8192)
    srd(a, 32, 8, 9, 1024 * 8192)
    srd(a, 36, 10, 11, 4096 * 2048)
    srd(a, 12, 20, 21, WS_SIZE)
    WQ = 128
    WO = 224
    a(f"""
    s_lshl_b32 s45, s44, 13
    s_add_u32 s45, s45, {L_STG}
    v_lshrrev_b32 v3, 1, v1
    v_and_b32 v4, 1, v1
    s_lshl_b32 s46, s44, 8
    v_add_u32 v5, s46, v3
    v_lshlrev_b32 v5, 13, v5
    v_lshlrev_b32 v6, 4, v4
    v_add_u32 v5, v5, v6
    s_lshl_b32 s46, s40, 8
    s_lshl_b32 s47, s41, 5
    s_add_u32 s46, s46, s47
    v_lshlrev_b32 v7, 5, v3
    v_add_u32 v7, v7, v6
    v_add_u32 v7, s45, v7
    """)
    a("""
    v_lshrrev_b32 v8, 4, v1
    v_lshlrev_b32 v8, 3, v8
    v_bfe_u32 v9, v1, 2, 2
    v_add_u32 v8, v8, v9
    v_lshlrev_b32 v8, 5, v8
    v_and_b32 v9, 3, v1
    v_lshlrev_b32 v9, 3, v9
    v_add_u32 v8, v8, v9
    v_add_u32 v8, s45, v8
    """)
    for m, sr in enumerate((24, 28, 32)):
        a("v_mov_b32 v9, v5")
        for i in range(8):
            a(f"buffer_load_dwordx4 v[{16+4*i}:{19+4*i}], v9, s[{sr}:{sr+3}], s46 offen")
            if i < 7:
                a("v_add_u32 v9, 0x40000, v9")
        a("s_waitcnt vmcnt(0)")
        for i in range(8):
            a(f"ds_write_b128 v7, v[{16+4*i}:{19+4*i}] offset:{1024*i}")
        a("s_waitcnt lgkmcnt(0)")
        for ks in range(8):
            r = WQ + (m * 8 + ks) * 4
            a(f"ds_read_b64_tr_b16 v[{r}:{r+1}], v8 offset:{ks*1024}")
            a(f"ds_read_b64_tr_b16 v[{r+2}:{r+3}], v8 offset:{ks*1024+128}")
        a("s_waitcnt lgkmcnt(0)")
    a(f"""
    v_lshrrev_b32 v3, 2, v1
    v_and_b32 v4, 3, v1
    s_lshl_b32 s46, s40, 7
    v_add_u32 v5, s46, v3
    v_lshlrev_b32 v5, 11, v5
    v_lshlrev_b32 v6, 4, v4
    v_add_u32 v5, v5, v6
    s_lshl_b32 s46, s41, 8
    s_lshl_b32 s47, s44, 6
    s_add_u32 s46, s46, s47
    v_lshlrev_b32 v7, 6, v3
    v_add_u32 v7, v7, v6
    v_add_u32 v7, s45, v7
    """)
    for i in range(8):
        a(f"buffer_load_dwordx4 v[{16+4*i}:{19+4*i}], v5, s[36:39], s46 offen")
        if i < 7:
            a("v_add_u32 v5, 0x8000, v5")
    a("s_waitcnt vmcnt(0)")
    for i in range(8):
        a(f"ds_write_b128 v7, v[{16+4*i}:{19+4*i}] offset:{1024*i}")
    a("""
    v_lshrrev_b32 v8, 4, v1
    v_lshlrev_b32 v8, 2, v8
    v_bfe_u32 v9, v1, 2, 2
    v_add_u32 v8, v8, v9
    v_lshlrev_b32 v8, 6, v8
    v_and_b32 v9, 3, v1
    v_lshlrev_b32 v9, 3, v9
    v_add_u32 v8, v8, v9
    v_add_u32 v8, s45, v8
    s_waitcnt lgkmcnt(0)
    """)
    for dt in range(8):
        for nt in range(2):
            r = WO + (dt * 2 + nt) * 2
            a(f"ds_read_b64_tr_b16 v[{r}:{r+1}], v8 offset:{dt*1024 + nt*32}")
    a("s_waitcnt lgkmcnt(0)")
    if not os.environ.get("NOPF"):
        a(f"""
        s_load_dwordx2 s[4:5], s[0:1], {KA['w1']}
        s_load_dwordx2 s[6:7], s[0:1], {KA['w2']}
        s_lshl_b32 s45, s2, 12
        v_lshlrev_b32 v16, 4, v0
        v_add_u32 v16, s45, v16
        s_waitcnt lgkmcnt(0)
        """)
        for m, (lo, hi) in enumerate(((4, 5), (6, 7))):
            srd(a, 24, lo, hi, 1024 * 7168)
            for i in range(7):
                a(f"s_mov_b32 s45, {i*1048576}")
                a(f"buffer_load_dwordx4 v[{20+4*(i%4)}:{23+4*(i%4)}], v16, s[24:27], s45 offen")
        a("s_waitcnt vmcnt(0)")
    a(f"""
    v_mov_b32 v16, 0
    v_lshlrev_b32 v3, 2, v0
    """)
    for base in (L_QM, L_KM, L_VM):
        a(f"ds_write_b32 v3, v16 offset:{base + 8*LROW}")
        a(f"ds_write_b32 v3, v16 offset:{base + 8*LROW + 1024}")
    a(f"""
    v_cmp_gt_u32 vcc, 32, v0
    s_and_saveexec_b64 s[48:49], vcc
    """)
    for base in (L_QM, L_KM, L_VM):
        a(f"ds_write_b32 v3, v16 offset:{base + 8*LROW + 2048}")
    a("s_mov_b64 exec, s[48:49]")
    a(f"""
    v_and_b32 v3, 7, v1
    v_lshlrev_b32 v3, 11, v3
    v_lshrrev_b32 v4, 4, v1
    v_lshlrev_b32 v4, 4, v4
    v_add_u32 v3, v3, v4
    s_lshl_b32 s45, s44, 9
    v_add_u32 v2, s45, v3
    """)
    a(f"""
    v_lshrrev_b32 v4, 4, v1
    v_lshlrev_b32 v4, 8, v4
    v_and_b32 v5, 15, v1
    v_lshlrev_b32 v5, 2, v5
    v_add_u32 v4, v4, v5
    s_mul_i32 s45, s44, 3072
    v_add_u32 v3, s45, v4
    """)
    a(f"""
    v_lshrrev_b32 v5, 3, v1
    v_lshlrev_b32 v5, 6, v5
    v_and_b32 v6, 7, v1
    v_lshlrev_b32 v6, 3, v6
    v_add_u32 v5, v5, v6
    s_lshl_b32 s45, s44, 10
    v_add_u32 v4, s45, v5
    """)
    a(f"""
    s_mul_i32 s45, s40, 6144
    s_lshl_b32 s46, s44, 11
    s_add_u32 s45, s45, s46
    s_lshl_b32 s46, s41, 5
    s_add_u32 s45, s45, s46
    s_add_u32 s45, s45, {WS_MKV:#x}
    v_lshrrev_b32 v5, 3, v1
    v_lshlrev_b32 v5, 8, v5
    v_and_b32 v7, 7, v1
    v_lshlrev_b32 v7, 2, v7
    v_add_u32 v5, v5, v7
    v_add_u32 v5, s45, v5
    """)
    a(f"""
    s_mul_i32 s45, s40, 6144
    s_add_u32 s45, s45, {WS_MKV:#x}
    v_lshlrev_b32 v7, 3, v0
    v_add_u32 v7, s45, v7
    """)
    a(f"""
    v_lshrrev_b32 v8, 5, v0
    v_mul_u32_u24 v8, {LROW}, v8
    v_and_b32 v9, 31, v0
    v_lshlrev_b32 v9, 3, v9
    v_add_u32 v8, v8, v9
    """)
    a(f"""
    v_lshrrev_b32 v10, 4, v1
    s_lshl_b32 s45, s44, 3
    v_add_u32 v10, s45, v10
    s_mov_b32 s46, 24576
    v_mul_lo_u32 v9, v10, s46
    v_and_b32 v11, 15, v1
    v_lshlrev_b32 v11, 4, v11
    v_add_u32 v9, v9, v11
    s_lshl_b32 s45, s40, 8
    s_add_u32 s45, s45, {WS_QKV + 8192:#x}
    v_add_u32 v9, s45, v9
    v_mul_u32_u24 v10, {LROW}, v10
    v_add_u32 v10, v10, v11
    """)
    a(f"""
    v_and_b32 v11, 15, v1
    v_mul_u32_u24 v11, {LROW}, v11
    v_lshrrev_b32 v12, 4, v1
    v_lshlrev_b32 v12, 4, v12
    v_add_u32 v11, v11, v12
    """)
    a(f"""
    v_lshrrev_b32 v12, 4, v1
    v_lshlrev_b32 v12, 2, v12
    v_bfe_u32 v13, v1, 2, 2
    v_add_u32 v12, v12, v13
    v_mul_u32_u24 v12, {LROW}, v12
    v_and_b32 v13, 3, v1
    v_lshlrev_b32 v13, 3, v13
    v_add_u32 v12, v12, v13
    """)
    a(f"""
    s_and_b32 s68, s2, 7
    s_lshr_b32 s69, s2, 3
    v_and_b32 v13, 7, v1
    v_lshlrev_b32 v13, 7, v13
    v_lshrrev_b32 v14, 4, v1
    v_lshlrev_b32 v14, 4, v14
    v_add_u32 v13, v13, v14
    s_lshl_b32 s45, s41, 14
    s_lshl_b32 s46, s44, 12
    s_add_u32 s45, s45, s46
    s_lshr_b32 s46, s40, 3
    s_lshl_b32 s46, s46, 10
    s_add_u32 s45, s45, s46
    s_lshl_b32 s46, s68, 18
    s_add_u32 s45, s45, s46
    s_add_u32 s45, s45, {WS_RED:#x}
    v_add_u32 v13, s45, v13
    """)
    a(f"""
    s_lshl_b32 s45, s68, 18
    s_lshl_b32 s46, s69, 12
    s_add_u32 s45, s45, s46
    s_add_u32 s45, s45, {WS_RED:#x}
    v_lshlrev_b32 v14, 4, v1
    v_add_u32 v14, s45, v14
    """)
    a(f"""
    s_lshl_b32 s45, s69, 13
    s_lshl_b32 s46, s68, 10
    s_add_u32 s45, s45, s46
    s_add_u32 s45, s45, {WS_GRED:#x}
    v_lshlrev_b32 v6, 4, v1
    v_add_u32 v6, s45, v6
    s_lshl_b32 s45, s69, 13
    s_add_u32 s45, s45, {WS_GRED:#x}
    s_mov_b32 s71, s45
    """)
    a(f"""
    v_and_b32 v15, 7, v1
    v_lshlrev_b32 v15, 3, v15
    v_lshrrev_b32 v16, 3, v1
    v_lshlrev_b32 v16, 11, v16
    v_add_u32 v15, v15, v16
    s_lshl_b32 s45, s69, 6
    v_add_u32 v15, s45, v15
    v_cmp_le_u32 s[50:51], 32, v1
    v_and_b32 v16, 8, v1
    v_cmp_eq_u32 s[52:53], 0, v16
    s_lshl_b32 s65, s68, 20
    """)
    xp = a.lab("c_xpoll")
    a(f"""
    s_getreg_b32 s67, hwreg(HW_REG_XCC_ID)
    s_and_b32 s67, s67, 15
    v_mov_b32 v32, s67
    s_lshl_b32 s45, s2, 2
    s_add_u32 s45, s45, {WS_XCC:#x}
    v_mov_b32 v33, 0
    buffer_store_dword v32, v33, s[12:15], s45 offen sc1
    v_and_b32 v33, 31, v1
    v_lshlrev_b32 v33, 5, v33
    s_lshl_b32 s45, s68, 2
    s_add_u32 s45, s45, {WS_XCC:#x}
    s_mov_b32 s70, 0
    {xp}:
    s_sleep 4
    buffer_load_dword v34, v33, s[12:15], s45 offen sc1
    s_waitcnt vmcnt(0)
    s_add_u32 s70, s70, 1
    s_cmp_ge_u32 s70, 0x200000
    s_cbranch_scc1 {done}
    v_cmp_eq_u32 vcc, -1, v34
    s_nop 1
    s_cbranch_vccnz {xp}
    v_cmp_ne_u32 vcc, s67, v34
    s_nop 1
    s_cmp_eq_u64 vcc, 0
    s_cselect_b32 s67, {int(os.environ.get("FAST", "1"))}, 0
    """)
    a(f"""
    s_mov_b32 s60, 0
    s_mov_b32 s61, {WS_MEMB:#x}
    s_mov_b32 s62, 0
    s_mov_b32 s63, 0
    s_mov_b32 s64, 0
    v_lshlrev_b32 v0, 4, v1
    s_waitcnt lgkmcnt(0)
    s_barrier
    """)
    loop = a.lab("c_loop")
    a(f"{loop}:")
    stamp(a, 0)
    a("""
    buffer_load_dwordx4 v[16:19], v9, s[12:15], s63 offen
    s_add_u32 s45, s63, 98304
    buffer_load_dwordx4 v[20:23], v9, s[12:15], s45 offen
    s_add_u32 s46, s63, 8192
    buffer_load_dwordx4 v[24:27], v9, s[12:15], s46 offen
    s_add_u32 s45, s45, 8192
    buffer_load_dwordx4 v[28:31], v9, s[12:15], s45 offen
    """)
    mp = a.lab("c_mpoll")
    a(f"""
    s_mov_b32 s70, 0
    s_add_u32 s66, s61, s65
    v_and_b32 v64, 7, v1
    v_lshlrev_b32 v64, 6, v64
    s_lshl_b32 s45, s44, 9
    s_add_u32 s45, s45, {7*2048 + 60}
    v_add_u32 v64, s45, v64
    s_cmp_eq_u32 s44, 1
    s_cbranch_scc1 {mp}_q
    s_cmp_eq_u32 s60, 0
    s_cbranch_scc1 {mp}_q
    s_sleep {int(os.environ.get("SLQ0", "0"))}
    {mp}_q:
    buffer_load_dword v65, v64, s[12:15], s66 offen sc1
    s_waitcnt vmcnt(0)
    v_cmp_eq_u32 vcc, -1, v65
    s_nop 1
    s_cbranch_vccz {mp}_f
    s_sleep {SLQ}
    s_add_u32 s70, s70, 1
    s_cmp_lt_u32 s70, 0x200000
    s_cbranch_scc1 {mp}_q
    s_branch {done}
    {mp}:
    s_sleep {SLB}
    s_add_u32 s70, s70, 1
    s_cmp_ge_u32 s70, 0x200000
    s_cbranch_scc1 {done}
    {mp}_f:
    """)
    for ks in range(8):
        a(f"buffer_load_dwordx4 v[{32+4*ks}:{35+4*ks}], v2, s[12:15], s66 offen offset:{64*ks} sc1")
    a("s_waitcnt vmcnt(0)")
    a("v_and_b32 v64, v32, v33")
    for r in range(34, 64, 2):
        a(f"v_and_b32 v65, v{r}, v{r+1}")
        a(f"v_max_u32 v64, v64, v65")
    a.l = a.l[:-31]
    a("v_max_u32 v64, v32, v33")
    for r in range(34, 64, 2):
        a(f"v_max3_u32 v64, v64, v{r}, v{r+1}")
    a(f"""
    v_cmp_eq_u32 vcc, -1, v64
    s_nop 1
    s_cbranch_vccnz {mp}
    """)
    stamp(a, 1)
    ACQ = 96
    for ks in range(8):
        b = 32 + 4 * ks
        for m in range(3):
            w = WQ + (m * 8 + ks) * 4
            cc = "0" if ks == 0 else f"v[{ACQ+4*m}:{ACQ+4*m+3}]"
            a(f"v_mfma_f32_16x16x32_bf16 v[{ACQ+4*m}:{ACQ+4*m+3}], v[{b}:{b+3}], v[{w}:{w+3}], {cc}")
    a(f"""
    ds_write_b128 v10, v[16:19] offset:{L_KX}
    ds_write_b128 v10, v[20:23] offset:{L_KX + 4*LROW}
    ds_write_b128 v10, v[24:27] offset:{L_VX}
    ds_write_b128 v10, v[28:31] offset:{L_VX + 4*LROW}
    s_nop 3
    """)
    a("s_nop 7")
    stamp(a, 2)
    stamp(a, 2, "3")
    for m in range(3):
        for r in range(4):
            a(f"ds_write_b32 v3, v{ACQ+4*m+r} offset:{L_PART + m*1024 + r*64}")
    a("""
    s_waitcnt lgkmcnt(0)
    s_barrier
    """)
    stamp(a, 3, "3")
    nored = a.lab("c_nored")
    a(f"""
    s_cmp_eq_u32 s44, 3
    s_cbranch_scc1 {nored}
    """)
    for w in range(4):
        a(f"ds_read_b64 v[{32+2*w}:{33+2*w}], v4 offset:{L_PART + w*3072}")
    a(f"""
    s_waitcnt lgkmcnt(0)
    v_add_f32 v32, v32, v34
    v_add_f32 v33, v33, v35
    v_add_f32 v36, v36, v38
    v_add_f32 v37, v37, v39
    v_add_f32 v32, v32, v36
    v_add_f32 v33, v33, v37
    v_cvt_pk_bf16_f32 v40, v32, v33
    v_mov_b32 v41, 0xfffefffe
    v_cmp_eq_u32 vcc, -1, v40
    s_nop 1
    v_cndmask_b32 v40, v40, v41, vcc
    s_cmp_eq_u32 s67, 1
    s_cbranch_scc1 {nored}_f
    buffer_store_dword v40, v5, s[12:15], s64 offen sc1
    s_branch {nored}
    {nored}_f:
    buffer_store_dword v40, v5, s[12:15], s64 offen
    {nored}:
    s_cmp_eq_u32 s60, 63
    s_cbranch_scc1 {done}
    """)
    stamp(a, 3)
    stamp(a, 4, "3")
    for ks in range(4):
        for t in range(2):
            r = 48 + (t * 4 + ks) * 4
            a(f"ds_read_b128 v[{r}:{r+3}], v11 offset:{L_KX + t*16*LROW + 64*ks}")
    for dt in range(8):
        for t in range(2):
            r = (dt * 2 + t) * 2
            a(f"ds_read_b64_tr_b16 a[{r}:{r+1}], v12 offset:{L_VX + t*16*LROW + 32*dt}")
    gp = a.lab("c_gpoll")
    if CQ:
        a(f"""
        v_min_u32 v38, 23, v1
        v_lshrrev_b32 v39, 3, v38
        v_lshlrev_b32 v39, 11, v39
        v_and_b32 v38, 7, v38
        v_lshlrev_b32 v38, 5, v38
        v_add_u32 v38, v38, v39
        s_mul_i32 s45, s40, 6144
        s_add_u32 s45, s45, {WS_MKV + 7*256 + 28:#x}
        v_add_u32 v38, s45, v38
        s_mov_b32 s70, 0
        {gp}_q:
        buffer_load_dword v39, v38, s[12:15], s64 offen sc1
        s_waitcnt vmcnt(0)
        v_cmp_eq_u32 vcc, -1, v39
        s_nop 1
        s_cbranch_vccz {gp}_f
        s_sleep 1
        s_add_u32 s70, s70, 1
        s_cmp_lt_u32 s70, 0x200000
        s_cbranch_scc1 {gp}_q
        s_branch {done}
        """)
    a(f"""
    s_mov_b32 s70, 0
    {gp}:
    s_sleep {SLC}
    s_add_u32 s70, s70, 1
    s_cmp_ge_u32 s70, 0x200000
    s_cbranch_scc1 {done}
    {gp}_f:
    buffer_load_dwordx2 v[32:33], v7, s[12:15], s64 offen sc1
    buffer_load_dwordx2 v[34:35], v7, s[12:15], s64 offen offset:2048 sc1
    s_add_u32 s45, s64, 4096
    buffer_load_dwordx2 v[36:37], v7, s[12:15], s45 offen sc1
    s_waitcnt vmcnt(0)
    v_max3_u32 v38, v32, v33, v34
    v_max3_u32 v38, v38, v35, v36
    v_max_u32 v38, v38, v37
    v_cmp_eq_u32 vcc, -1, v38
    s_nop 1
    s_cbranch_vccnz {gp}
    """)
    stamp(a, 5, "3")
    a(f"""
    ds_write_b64 v8, v[32:33] offset:{L_QM}
    ds_write_b64 v8, v[34:35] offset:{L_KM}
    ds_write_b64 v8, v[36:37] offset:{L_VM}
    s_waitcnt lgkmcnt(0)
    s_barrier
    """)
    stamp(a, 4)
    stamp(a, 2, "2")
    stamp(a, 6, "3")
    for ks in range(4):
        a(f"ds_read_b128 v[{32+4*ks}:{35+4*ks}], v11 offset:{L_QM + 64*ks}")
        a(f"ds_read_b128 v[{80+4*ks}:{83+4*ks}], v11 offset:{L_KM + 64*ks}")
    for dt in range(8):
        a(f"ds_read_b64_tr_b16 a[{32+2*dt}:{33+2*dt}], v12 offset:{L_VM + 32*dt}")
    S = 96
    for ks in range(4):
        a(f"s_waitcnt lgkmcnt({14-2*ks})")
        for t in range(3):
            r = 48 + (t * 4 + ks) * 4
            cc = "0" if ks == 0 else f"v[{S+4*t}:{S+4*t+3}]"
            a(f"v_mfma_f32_16x16x32_bf16 v[{S+4*t}:{S+4*t+3}], v[{r}:{r+3}], v[{32+4*ks}:{35+4*ks}], {cc}")
    a("s_nop 7")
    a("v_mov_b32 v108, 0xff800000")
    a(f"v_mov_b32 v109, v{S+11}")
    stamp(a, 3, "2")
    for r in range(4):
        a(f"v_cndmask_b32 v{S+8+r}, v{S+8+r}, v108, s[50:51]")
    a(f"v_max3_f32 v108, v{S}, v{S+1}, v{S+2}")
    for r in range(3, 12, 2):
        if r + 1 < 12:
            a(f"v_max3_f32 v108, v108, v{S+r}, v{S+r+1}")
        else:
            a(f"v_max_f32 v108, v108, v{S+r}")

    def xreduce(v, t1, op):
        a(f"""
        v_mov_b32 v{t1}, v{v}
        s_nop 1
        v_permlane32_swap_b32 v{v}, v{t1}
        s_nop 1
        {op} v{v}, v{v}, v{t1}
        v_mov_b32 v{t1}, v{v}
        s_nop 1
        v_permlane16_swap_b32 v{v}, v{t1}
        s_nop 1
        {op} v{v}, v{v}, v{t1}
        """)
    xreduce(108, 109, "v_max_f32")
    a("s_mov_b32 s45, 0x3e0293ee")
    a("v_mul_f32 v108, s45, v108")
    for r in range(12):
        a(f"v_fma_f32 v{S+r}, v{S+r}, s45, -v108")
        a(f"v_exp_f32 v{S+r}, v{S+r}")
    a("s_nop 0")
    a(f"v_add_f32 v109, v{S}, v{S+1}")
    for r in range(2, 12):
        a(f"v_add_f32 v109, v109, v{S+r}")
    xreduce(109, 110, "v_add_f32")
    a("""
    v_rcp_f32 v109, v109
    s_nop 0
    """)
    for r in range(12):
        a(f"v_mul_f32 v{S+r}, v{S+r}, v109")
    P = 112
    for t in range(3):
        a(f"v_cvt_pk_bf16_f32 v{P+2*t}, v{S+4*t}, v{S+4*t+1}")
        a(f"v_cvt_pk_bf16_f32 v{P+2*t+1}, v{S+4*t+2}, v{S+4*t+3}")
    stamp(a, 4, "2")
    a("s_waitcnt lgkmcnt(0)")
    for t in range(3):
        for dt in range(8):
            r = (dt * 2 + t) * 2 if t < 2 else 32 + 2 * dt
            cc = "0" if t == 0 else f"v[{32+4*dt}:{35+4*dt}]"
            a(f"v_mfma_f32_16x16x16_bf16 v[{32+4*dt}:{35+4*dt}], a[{r}:{r+1}], v[{P+2*t}:{P+2*t+1}], {cc}")
    a("s_nop 4")
    for dt in range(8):
        a(f"v_cvt_pk_bf16_f32 v{16+2*dt}, v{32+4*dt}, v{33+4*dt}")
        a(f"v_cvt_pk_bf16_f32 v{17+2*dt}, v{34+4*dt}, v{35+4*dt}")
    stamp(a, 5, "2")
    a("s_nop 1")
    for d4 in range(4):
        for hf in range(2):
            dt = hf * 4 + d4
            for nt in range(2):
                w = WO + (dt * 2 + nt) * 2
                cr = 64 + (hf * 2 + nt) * 4
                cc = "0" if d4 == 0 else f"v[{cr}:{cr+3}]"
                a(f"v_mfma_f32_16x16x16_bf16 v[{cr}:{cr+3}], v[{w}:{w+1}], v[{16+2*dt}:{17+2*dt}], {cc}")
    a("s_nop 7")
    for r in range(8):
        a(f"v_add_f32 v{32+r}, v{64+r}, v{72+r}")
    a("v_mov_b32 v48, 0x7fffffff")
    for r in range(8):
        a(f"v_cmp_eq_u32 vcc, -1, v{32+r}")
        a("s_nop 1")
        a(f"v_cndmask_b32 v{32+r}, v{32+r}, v48, vcc")
    stamp(a, 5)
    stamp(a, 6, "2")
    pf = a.lab("c_pf")
    a(f"""
    s_mov_b64 exec, s[52:53]
    s_cmp_eq_u32 s67, 1
    s_cbranch_scc1 {pf}
    buffer_store_dwordx4 v[32:35], v13, s[12:15], s62 offen sc1
    buffer_store_dwordx4 v[36:39], v13, s[12:15], s62 offen offset:64 sc1
    s_branch {pf}_d
    {pf}:
    buffer_store_dwordx4 v[32:35], v13, s[12:15], s62 offen
    buffer_store_dwordx4 v[36:39], v13, s[12:15], s62 offen offset:64
    {pf}_d:
    s_mov_b64 exec, -1
    """)
    nrd = a.lab("c_nord")
    rp = a.lab("c_rpoll")
    a(f"""
    s_cmp_lg_u32 s44, 0
    s_cbranch_scc1 {nrd}_1
    """)
    if AQ:
        a(f"""
        v_and_b32 v48, 7, v1
        v_lshrrev_b32 v49, 1, v48
        v_lshlrev_b32 v49, 10, v49
        v_and_b32 v48, 1, v48
        v_lshlrev_b32 v48, 6, v48
        v_add_u32 v48, v48, v49
        v_subrev_u32 v49, v0, v14
        v_add_u32 v48, v48, v49
        v_add_u32 v48, {7*128 + 60}, v48
        s_mov_b32 s70, 0
        {rp}_q:
        buffer_load_dword v49, v48, s[12:15], s62 offen sc1
        s_waitcnt vmcnt(0)
        v_cmp_eq_u32 vcc, -1, v49
        s_nop 1
        s_cbranch_vccz {rp}_f
        s_sleep 1
        s_add_u32 s70, s70, 1
        s_cmp_lt_u32 s70, 0x200000
        s_cbranch_scc1 {rp}_q
        s_branch {done}
        """)
    a(f"""
    s_mov_b32 s70, 0
    {rp}:
    s_sleep {SLA}
    s_add_u32 s70, s70, 1
    s_cmp_ge_u32 s70, 0x200000
    s_cbranch_scc1 {done}
    {rp}_f:
    """)
    for i in range(4):
        a(f"buffer_load_dwordx4 v[{32+4*i}:{35+4*i}], v14, s[12:15], s62 offen offset:{1024*i} sc1")
    a("s_waitcnt vmcnt(0)")
    a("v_max3_u32 v48, v32, v33, v34")
    for r in range(35, 47, 2):
        a(f"v_max3_u32 v48, v48, v{r}, v{r+1}")
    a(f"""
    v_max_u32 v48, v48, v47
    v_cmp_eq_u32 vcc, -1, v48
    s_nop 1
    s_cbranch_vccnz {rp}
    """)
    for r in range(4):
        a(f"v_add_f32 v{32+r}, v{32+r}, v{36+r}")
        a(f"v_add_f32 v{40+r}, v{40+r}, v{44+r}")
    a("v_mov_b32 v48, 0x7fffffff")
    for r in range(4):
        a(f"v_add_f32 v{32+r}, v{32+r}, v{40+r}")
        a(f"v_cmp_eq_u32 vcc, -1, v{32+r}")
        a("s_nop 1")
        a(f"v_cndmask_b32 v{32+r}, v{32+r}, v48, vcc")
    a("s_lshl_b32 s45, s60, 18")
    a("buffer_store_dwordx4 v[32:35], v6, s[12:15], s45 offen sc1")
    a("""
    v_mov_b32 v40, -1
    v_mov_b32 v41, -1
    v_mov_b32 v42, -1
    v_mov_b32 v43, -1
    """)
    rs = a.lab("c_rs")
    a(f"""
    s_cmp_eq_u32 s67, 1
    s_cbranch_scc1 {rs}
    """)
    for i in range(4):
        a(f"buffer_store_dwordx4 v[40:43], v14, s[12:15], s62 offen offset:{1024*i} sc1")
    a(f"s_branch {rs}_d")
    a(f"{rs}:")
    for i in range(4):
        a(f"buffer_store_dwordx4 v[40:43], v14, s[12:15], s62 offen offset:{1024*i}")
    a(f"{rs}_d:")
    gg = a.lab("c_ggpoll")
    a(f"""
    s_branch {nrd}
    {nrd}_1:
    s_cmp_lg_u32 s44, 1
    s_cbranch_scc1 {nrd}
    v_mov_b32 v40, -1
    v_mov_b32 v41, -1
    v_mov_b32 v42, -1
    v_mov_b32 v43, -1
    s_lshl_b32 s45, s60, 18
    s_add_u32 s45, s45, s71
        s_add_u32 s46, s45, 4096
    """)
    b = 32
    a("s_mov_b32 s70, 0")
    SLG0 = int(os.environ.get("SLG0", "34"))
    if SLG0:
        a(f"s_sleep {SLG0}")
    a(f"{gg}:")
    a(f"""
    s_sleep {SLG}
    s_add_u32 s70, s70, 1
    s_cmp_ge_u32 s70, 0x200000
    s_cbranch_scc1 {done}
    """)
    for i in range(8):
        a(f"buffer_load_dwordx4 v[{b+4*i}:{b+4*i+3}], v0, s[12:15], s{45 if i < 4 else 46} offen offset:{1024*(i&3)} sc1")
    a("s_waitcnt vmcnt(0)")
    a(f"v_max3_u32 v31, v{b}, v{b+1}, v{b+2}")
    for r in range(b + 3, b + 31, 2):
        a(f"v_max3_u32 v31, v31, v{r}, v{r+1}")
    a(f"""
    v_max_u32 v31, v31, v{b+31}
    v_cmp_eq_u32 vcc, -1, v31
    s_nop 1
    s_cbranch_vccnz {gg}
    """)
    for r in range(16):
        a(f"v_add_f32 v{16+r}, v{b+r}, v{b+16+r}")
    for st in (8, 4):
        for r in range(st):
            a(f"v_add_f32 v{16+r}, v{16+r}, v{16+st+r}")
    a("v_mov_b32 v31, 0xfffefffe")
    for r in range(2):
        a(f"v_cvt_pk_bf16_f32 v{24+r}, v{16+2*r}, v{17+2*r}")
        a(f"v_cmp_eq_u32 vcc, -1, v{24+r}")
        a("s_nop 1")
        a(f"v_cndmask_b32 v{24+r}, v{24+r}, v31, vcc")
    mf = a.lab("c_mf")
    a(f"""
    s_add_u32 s46, s61, s65
    s_add_u32 s46, s46, 16384
    s_cmp_eq_u32 s67, 1
    s_cbranch_scc1 {mf}
    buffer_store_dwordx2 v[24:25], v15, s[12:15], s46 offen sc1
    s_branch {mf}_d
    {mf}:
    buffer_store_dwordx2 v[24:25], v15, s[12:15], s46 offen
    {mf}_d:
    """)
    a(f"{nrd}:")
    stamp(a, 6)
    if STAMP:
        nst = a.lab("c_nost")
        a(f"""
        s_cmp_lg_u32 s60, 20
        s_cbranch_scc1 {nst}
        s_cmp_lg_u32 s44, 0
        s_cbranch_scc1 {nst}
        s_mov_b32 s84, s12
        s_mov_b32 s85, s13
        s_mov_b32 s86, s14
        s_mov_b32 s87, s15
        s_lshl_b32 s88, s2, 5
        s_add_u32 s88, s88, 0xA000000
        v_mov_b32 v32, s88
        """)
        for i in range(7):
            a(f"v_mov_b32 v33, s{72+i}")
            a(f"buffer_store_dword v33, v32, s[84:87], 0 offen offset:{4*i}")
        a(f"{nst}:")
    a(f"""
    s_add_u32 s60, s60, 1
    s_add_u32 s61, s61, 16384
    s_xor_b32 s62, s62, 0x20000
    s_add_u32 s63, s63, {32*24576}
    s_add_u32 s64, s64, 196608
    s_branch {loop}
    {done}:
    s_endpgm
    """)
    return name, kd(name, 304, accum=256), "grid=(256,1,1) block=(256,1,1) lds=90112"


def gen_xattn(a):
    name = "k4_xattn_kernel"
    kernel_header(a, name)
    done = a.lab("x_done")
    LROW = 272
    WLDS = 48 * LROW
    a(f"""
    s_cmp_ge_u32 s2, 512
    s_cbranch_scc1 {done}
    s_load_dwordx2 s[20:21], s[0:1], {KA['ws']}
    v_and_b32 v1, 63, v0
    v_lshrrev_b32 v2, 6, v0
    s_nop 0
    v_readfirstlane_b32 s44, v2
    s_lshl_b32 s40, s2, 2
    s_add_u32 s40, s40, s44
    s_lshr_b32 s41, s40, 5
    s_and_b32 s42, s40, 31
    s_waitcnt lgkmcnt(0)
    """)
    srd(a, 8, 20, 21, 2048 * 24576, WS_QKV)
    srd(a, 12, 20, 21, 64 * 196608, WS_MKV)
    srd(a, 16, 20, 21, 2048 * 8192, WS_OX)
    a(f"""
    s_mul_i32 s45, s41, {32*24576}
    s_lshl_b32 s46, s42, 8
    s_add_u32 s45, s45, s46
    s_mul_i32 s47, s41, 196608
    s_mul_i32 s46, s42, 6144
    s_add_u32 s47, s47, s46
    s_add_u32 s47, s47, 2048
    """)
    a(f"""
    v_and_b32 v3, 15, v1
    s_mov_b32 s46, 24576
    v_mul_lo_u32 v3, v3, s46
    v_lshrrev_b32 v4, 4, v1
    v_lshlrev_b32 v4, 4, v4
    v_add_u32 v3, v3, v4
    v_add_u32 v5, {16*24576}, v3
    v_and_b32 v6, 7, v1
    v_lshlrev_b32 v6, 8, v6
    v_add_u32 v6, v6, v4
    s_add_u32 s48, s45, 8192
    s_add_u32 s49, s45, 16384
    """)
    Q = 16
    Kf = 48
    for qt, vv in enumerate((3, 5)):
        for ks in range(4):
            r = Q + (qt * 4 + ks) * 4
            a(f"buffer_load_dwordx4 v[{r}:{r+3}], v{vv}, s[8:11], s45 offen offset:{64*ks}")
    for kt, vv in enumerate((3, 5)):
        for ks in range(4):
            r = Kf + (kt * 4 + ks) * 4
            a(f"buffer_load_dwordx4 v[{r}:{r+3}], v{vv}, s[8:11], s48 offen offset:{64*ks}")
    for ks in range(4):
        r = Kf + (8 + ks) * 4
        a(f"buffer_load_dwordx4 v[{r}:{r+3}], v6, s[12:15], s47 offen offset:{64*ks}")
    a(f"""
    v_lshrrev_b32 v7, 4, v1
    v_mul_lo_u32 v8, v7, s46
    v_and_b32 v9, 15, v1
    v_lshlrev_b32 v9, 4, v9
    v_add_u32 v8, v8, v9
    v_mul_u32_u24 v10, {LROW}, v7
    v_add_u32 v10, v10, v9
    s_mul_i32 s50, s44, {WLDS}
    v_add_u32 v10, s50, v10
    v_lshlrev_b32 v11, 8, v7
    v_add_u32 v11, v11, v9
    s_add_u32 s51, s47, 2048
    """)
    VS = 96
    for i in range(8):
        a(f"s_add_u32 s52, s49, {i*4*24576}")
        a(f"buffer_load_dwordx4 v[{VS+4*i}:{VS+4*i+3}], v8, s[8:11], s52 offen")
    for i in range(2):
        a(f"buffer_load_dwordx4 v[{VS+32+4*i}:{VS+35+4*i}], v11, s[12:15], s51 offen offset:{1024*i}")
    for r in range(4):
        a(f"v_mov_b32 v{136+r}, 0")
    a(f"ds_write_b128 v10, v[136:139] offset:{40*LROW}")
    a(f"ds_write_b128 v10, v[136:139] offset:{44*LROW}")
    a("s_waitcnt vmcnt(0)")
    for i in range(10):
        a(f"ds_write_b128 v10, v[{VS+4*i}:{VS+4*i+3}] offset:{4*i*LROW}")
    S = 96
    for r in range(24):
        a(f"v_mov_b32 v{S+r}, 0")
    a("s_nop 1")
    pairs = [(0, 0), (0, 1), (1, 1), (2, 0), (2, 1)]
    for ks in range(4):
        for kt, qt in pairs:
            c = S + (kt * 2 + qt) * 4
            ka = Kf + (kt * 4 + ks) * 4
            qa = Q + (qt * 4 + ks) * 4
            a(f"v_mfma_f32_16x16x32_bf16 v[{c}:{c+3}], v[{ka}:{ka+3}], v[{qa}:{qa+3}], v[{c}:{c+3}]")
    a(f"""
    s_waitcnt lgkmcnt(0)
    v_lshrrev_b32 v12, 4, v1
    v_lshlrev_b32 v12, 2, v12
    v_and_b32 v13, 15, v1
    v_mov_b32 v14, 0xff800000
    v_cmp_le_u32 s[52:53], 32, v1
    v_xor_b32 v15, 16, v1
    v_lshlrev_b32 v15, 2, v15
    v_xor_b32 v2, 32, v1
    v_lshlrev_b32 v2, 2, v2
    s_nop 4
    """)
    for r in range(4):
        a(f"v_add_u32 v120, {r}, v12")
        a("v_cmp_gt_u32 vcc, v120, v13")
        a("s_nop 1")
        for t in (0, 3):
            c = S + t * 4 + r
            a(f"v_cndmask_b32 v{c}, v{c}, v14, vcc")
    for qt in range(2):
        for r in range(4):
            c = S + (4 + qt) * 4 + r
            a(f"v_cndmask_b32 v{c}, v{c}, v14, s[52:53]")
    a(f"""
    v_lshrrev_b32 v12, 4, v1
    v_lshlrev_b32 v12, 2, v12
    v_bfe_u32 v13, v1, 2, 2
    v_add_u32 v12, v12, v13
    v_mul_u32_u24 v12, {LROW}, v12
    v_and_b32 v13, 3, v1
    v_lshlrev_b32 v13, 3, v13
    v_add_u32 v12, v12, v13
    v_add_u32 v12, s50, v12
    """)
    for dt in range(8):
        for kt in range(3):
            r = 16 + (dt * 3 + kt) * 2
            a(f"ds_read_b64_tr_b16 v[{r}:{r+1}], v12 offset:{kt*16*LROW + 32*dt}")
    a("s_mov_b32 s54, 0x3e0293ee")
    P = 64
    for qt in range(2):
        tiles = [(0, 0), (2, 0)] if qt == 0 else [(0, 1), (1, 1), (2, 1)]
        regs = [S + (kt * 2 + q) * 4 + r for kt, q in tiles for r in range(4)]
        a(f"v_max_f32 v120, v{regs[0]}, v{regs[1]}")
        for i in range(2, len(regs), 2):
            a(f"v_max3_f32 v120, v120, v{regs[i]}, v{regs[i+1]}")
        a("""
        ds_bpermute_b32 v121, v15, v120
        s_waitcnt lgkmcnt(0)
        v_max_f32 v120, v120, v121
        ds_bpermute_b32 v121, v2, v120
        s_waitcnt lgkmcnt(0)
        v_max_f32 v120, v120, v121
        v_mul_f32 v120, s54, v120
        """)
        for r in regs:
            a(f"v_fma_f32 v{r}, v{r}, s54, -v120")
            a(f"v_exp_f32 v{r}, v{r}")
        a("s_nop 0")
        a(f"v_add_f32 v121, v{regs[0]}, v{regs[1]}")
        for r in regs[2:]:
            a(f"v_add_f32 v121, v121, v{r}")
        a("""
        ds_bpermute_b32 v122, v15, v121
        s_waitcnt lgkmcnt(0)
        v_add_f32 v121, v121, v122
        ds_bpermute_b32 v122, v2, v121
        s_waitcnt lgkmcnt(0)
        v_add_f32 v121, v121, v122
        v_rcp_f32 v121, v121
        s_nop 0
        """)
        for r in regs:
            a(f"v_mul_f32 v{r}, v{r}, v121")
        for kt, q in tiles:
            c = S + (kt * 2 + q) * 4
            p = P + (q * 3 + kt) * 2
            a(f"v_cvt_pk_bf16_f32 v{p}, v{c}, v{c+1}")
            a(f"v_cvt_pk_bf16_f32 v{p+1}, v{c+2}, v{c+3}")
    O = 96
    for r in range(64):
        a(f"v_mov_b32 v{O+r}, 0")
    a("s_nop 1")
    for qt in range(2):
        kts = (0, 2) if qt == 0 else (0, 1, 2)
        for kt in kts:
            for dt in range(8):
                c = O + (qt * 8 + dt) * 4
                v = 16 + (dt * 3 + kt) * 2
                p = P + (qt * 3 + kt) * 2
                a(f"v_mfma_f32_16x16x16_bf16 v[{c}:{c+3}], v[{v}:{v+1}], v[{p}:{p+1}], v[{c}:{c+3}]")
    a(f"""
    v_and_b32 v3, 15, v1
    v_lshlrev_b32 v3, 13, v3
    v_lshrrev_b32 v4, 4, v1
    v_lshlrev_b32 v4, 3, v4
    v_add_u32 v3, v3, v4
    s_lshl_b32 s45, s41, 18
    s_lshl_b32 s46, s42, 8
    s_add_u32 s45, s45, s46
    s_add_u32 s46, s45, {16*8192}
    s_nop 7
    """)
    for qt in range(2):
        for dt in range(8):
            c = O + (qt * 8 + dt) * 4
            a(f"v_cvt_pk_bf16_f32 v{c}, v{c}, v{c+1}")
            a(f"v_cvt_pk_bf16_f32 v{c+1}, v{c+2}, v{c+3}")
            a(f"buffer_store_dwordx2 v[{c}:{c+1}], v3, s[16:19], s{45+qt} offen offset:{32*dt}")
    a(f"""
    {done}:
    s_endpgm
    """)
    return name, kd(name, 160), f"grid=(512,1,1) block=(256,1,1) lds={4*WLDS}"


def main():
    hdr = open(os.path.join(os.path.dirname(__file__), "header.txt")).read()
    a = Asm()
    kernels = [gen_mod(a), gen_ln(a, 0), gen_gemm(a, 'qkv'), gen_chain(a), gen_xattn(a), gen_gemm(a, 'wo'),
               gen_ln(a, 1), gen_gemm(a, 'ffn1'), gen_gemm(a, 'ffn2')]
    only = os.environ.get("GEN_ONLY")
    launch = kernels
    if only:
        launch = kernels[:int(only)]
    out = hdr
    for n, _, l in launch:
        out += f"; @launch kernel={n} {l}\n"
    out += '.amdgcn_target "amdgcn-amd-amdhsa--gfx950"\n.text\n'
    out += a.text()
    out += '.section .rodata,"a"\n'
    for _, k, _ in kernels:
        out += k
    dst = sys.argv[1] if len(sys.argv) > 1 else f"/code/{NAME}.s"
    open(dst, "w").write(out)


if __name__ == "__main__":
    main()
```

```python
import os, sys, importlib
from gen import Asm
NAME = "adaLN_cond__memory_aug_recurrent_mem_tr__dense_activation_gelu__prompt"
ch = importlib.import_module(os.environ.get("CHAIN", "chain7"))
hdr = open(os.path.join(os.path.dirname(os.path.abspath(__file__)), "header.txt")).read()
a = Asm()
n, k, l = ch.gen_chain2(a)
out = hdr + f"; @launch kernel={n} {l}\n" + '.amdgcn_target "amdgcn-amd-amdhsa--gfx950"\n.text\n' + a.text() + '.section .rodata,"a"\n' + k
open(sys.argv[1] if len(sys.argv) > 1 else f"/code/{NAME}.s", "w").write(out)
```
